```python
import torch

def _softmax(x, axis=-1):
    return torch.softmax(x, dim=axis)
def _gelu(x):
    return torch.nn.functional.gelu(x, approximate="tanh")
def _silu(x):
    return torch.nn.functional.silu(x)
def _sigmoid(x):
    return torch.sigmoid(x)
def _layernorm(x, axis=-1, eps=1e-5):
    m = x.mean(dim=axis, keepdim=True)
    v = x.var(dim=axis, keepdim=True, unbiased=False)
    return (x - m) / torch.sqrt(v + eps)
def _scatter_add(tgt, idx, src, axis=0):
    return tgt.clone().index_add_(axis, idx, src)
def _segment_sum(src, seg, n):
    out = torch.zeros((n,) + src.shape[1:], dtype=src.dtype)
    return out.index_add_(0, seg, src)
def _pad(x, pw):
    flat = tuple(v for pair in reversed(pw) for v in pair)
    return torch.nn.functional.pad(x, flat)

kernel_name = 'sequential_preLN__ssm_conv_s4d__mixer_channel_mlp__prompt'

def setup_inputs():

    _w = (lambda a: (lambda t: t.to(torch.bfloat16) if t.is_floating_point() else t)(torch.as_tensor(a)))
    def _A_setup():
        Bsz, L, D, N = 1, 2048, 512, 128
        return {
            "u": _w((lambda *s: torch.randn(*s, dtype=torch.bfloat16) * 0.05)(Bsz, L, D)),
            "log_A_real": _w((lambda *s: torch.randn(*s, dtype=torch.bfloat16) * 3.2)(D, N) * 0.5),
            "A_imag": _w((lambda *s: torch.randn(*s, dtype=torch.bfloat16) * 0.05)(D, N) * 3.14),
            "C_real": _w((lambda *s: torch.randn(*s, dtype=torch.bfloat16) * 0.1)(D, N) / N ** 0.5),
            "C_imag": _w((lambda *s: torch.randn(*s, dtype=torch.bfloat16) * 0.2)(D, N) / N ** 0.5),
            "log_dt": _w((lambda *s: torch.randn(*s, dtype=torch.bfloat16) * 0.05)(D) * 0.5 - 4.0),
            "D_skip": _w((lambda *s: torch.randn(*s, dtype=torch.bfloat16) * 0.05)(D)),
        }
    _A_in = _A_setup()

    def _B_setup():
        B, S, D, F = 1, 2048, 512, 1376
        return {
            "x": _w((lambda *s: torch.randn(*s, dtype=torch.bfloat16) * 0.05)(B, S, D)),
            "w1": _w((lambda *s: torch.randn(*s, dtype=torch.bfloat16) * 1.6)(D, F) * (D ** -0.5)),
            "b1": _w((lambda *s: torch.randn(*s, dtype=torch.bfloat16) * 0.8)(F)),
            "w2": _w((lambda *s: torch.randn(*s, dtype=torch.bfloat16) * 0.05)(F, D) * (F ** -0.5)),
            "b2": _w((lambda *s: torch.randn(*s, dtype=torch.bfloat16) * 0.05)(D)),
        }
    _B_in = _B_setup()

    return {
        "A_u": _A_in["u"],
        "A_log_A_real": _A_in["log_A_real"],
        "A_A_imag": _A_in["A_imag"],
        "A_C_real": _A_in["C_real"],
        "A_C_imag": _A_in["C_imag"],
        "A_log_dt": _A_in["log_dt"],
        "A_D_skip": _A_in["D_skip"],
        "B_x": _B_in["x"],
        "B_w1": _B_in["w1"],
        "B_b1": _B_in["b1"],
        "B_w2": _B_in["w2"],
        "B_b2": _B_in["b2"],
    }

def reference(A_u, A_log_A_real, A_A_imag, A_C_real, A_C_imag, A_log_dt, A_D_skip, B_x, B_w1, B_b1, B_w2, B_b2):
    def _A_ref(u, log_A_real, A_imag, C_real, C_imag, log_dt, D_skip):
        L = u.shape[1]
        dt = torch.exp(log_dt)
        A = -torch.exp(log_A_real) + 1j * A_imag
        C = (C_real + 1j * C_imag) * dt[:, None]
        pos = (lambda x, dt: x.to(dt))(torch.arange(L), log_dt.dtype)
        P = torch.exp((A * dt[:, None])[:, :, None] * pos[None, None, :])
        K = 2.0 * torch.einsum("dn,dnl->dl", C, P).real
        L2 = 2 * L
        u_t = (lambda x, *d: x.permute(*d))(u, 0, 2, 1)
        Kf = (lambda x, *a, **k: torch.fft.rfft(x.float(), *a, **k))(K, L2)
        Uf = (lambda x, *a, **k: torch.fft.rfft(x.float(), *a, **k))(u_t, L2)
        y = (lambda x, *a, **k: torch.fft.irfft(x, *a, **k).to(torch.bfloat16))(Uf * Kf[None, :, :], L2)[:, :, :L]
        y = (lambda x, *d: x.permute(*d))(y, 0, 2, 1)
        return y + u * D_skip[None, None, :]

    def _B_ref(x, w1, b1, w2, b2):
        y = _layernorm(x, axis=-1)
        h = _gelu(torch.einsum("bsd,df->bsf", y, w1) + b1)
        return torch.einsum("bsf,fd->bsd", h, w2) + b2

    x = A_u
    h = x + _A_ref(_layernorm(x, axis=-1), A_log_A_real, A_A_imag, A_C_real, A_C_imag, A_log_dt, A_D_skip)
    h2 = h + _B_ref(_layernorm(h, axis=-1), B_w1, B_b1, B_w2, B_b2)
    return h2
```

```python
import re

TRANS = {"v_exp_f32", "v_log_f32", "v_rcp_f32", "v_rsq_f32", "v_sqrt_f32", "v_sin_f32", "v_cos_f32",
         "v_rcp_iflag_f32"}
REG_RE = re.compile(r"^(-|abs\()?(v|s|a)(\d+)\)?$")
RNG_RE = re.compile(r"^(v|s|a)\[(\d+):(\d+)\]$")

def parse_reg(tok):
    tok = tok.strip()
    t = tok
    if t.startswith("-"): t = t[1:]
    if t.startswith("abs(") and t.endswith(")"): t = t[4:-1]
    if t.startswith("|") and t.endswith("|"): t = t[1:-1]
    m = RNG_RE.match(t)
    if m:
        return {(m.group(1), i) for i in range(int(m.group(2)), int(m.group(3)) + 1)}
    m = re.match(r"^(v|s|a)(\d+)$", t)
    if m:
        return {(m.group(1), int(m.group(2)))}
    if t == "vcc": return {("s", 106), ("s", 107)}
    if t == "exec": return {("s", 126), ("s", 127)}
    if t == "m0": return {("s", 124)}
    return set()

class Rec:
    __slots__ = ("op", "kind", "wv", "rv", "ws", "rs", "passes", "sgemm", "srcc", "srcab", "trans",
                 "dpp", "wide_store", "data", "states", "text", "lanesel")

def classify(text):
    r = Rec()
    r.text = text
    body = text.split(";")[0].strip()
    parts = body.split(None, 1)
    op = parts[0]
    r.op = op
    rest = parts[1] if len(parts) > 1 else ""
    ops = [o.strip() for o in rest.split(",")] if rest else []
    mods = []
    if ops:
        last = ops[-1].split()
        ops[-1] = last[0] if last else ""
        mods = last[1:]
    r.wv, r.rv, r.ws, r.rs = set(), set(), set(), set()
    r.passes = 0; r.sgemm = False; r.srcc = set(); r.srcab = set(); r.trans = False
    r.dpp = any(m.startswith(("row_", "quad_perm", "wave_")) for m in mods) or op.endswith("_dpp")
    r.wide_store = False; r.data = set(); r.states = 1; r.lanesel = set()
    def add(dstv, dsts, regs):
        for x in regs:
            (dstv if x[0] in "va" else dsts).add(x)
    if op == "s_nop":
        r.kind = "nop"; r.states = int(ops[0], 0) + 1
        return r
    if op.startswith("v_mfma"):
        r.kind = "mfma"
        if "16x16x32" in op: r.passes = 4
        elif "32x32x16" in op: r.passes = 8
        elif "16x16x4_f32" in op: r.passes = 8; r.sgemm = True
        elif "32x32x2_f32" in op: r.passes = 16; r.sgemm = True
        else: raise ValueError("unknown mfma " + op)
        add(r.wv, r.ws, parse_reg(ops[0]))
        r.srcab = parse_reg(ops[1]) | parse_reg(ops[2])
        r.srcc = parse_reg(ops[3])
        r.rv = r.srcab | r.srcc
        return r
    if op.startswith("v_"):
        r.kind = "valu"
        base = op.replace("_e32", "").replace("_e64", "").replace("_dpp", "")
        r.trans = base in TRANS
        ndst = 1
        if base in ("v_add_co_u32", "v_sub_co_u32", "v_addc_co_u32", "v_subb_co_u32", "v_div_scale_f32", "v_mad_u64_u32"):
            ndst = 2
        if base.startswith("v_permlane") and "swap" in base:
            for o in ops[:2]:
                add(r.wv, r.ws, parse_reg(o)); add(r.rv, r.rs, parse_reg(o))
            return r
        for o in ops[:ndst]: add(r.wv, r.ws, parse_reg(o))
        for o in ops[ndst:]: add(r.rv, r.rs, parse_reg(o))
        if base in ("v_fmac_f32", "v_pk_fmac_f16", "v_writelane_b32") or "d16" in base:
            add(r.rv, r.rs, parse_reg(ops[0]))
        if base in ("v_readlane_b32", "v_writelane_b32"):
            r.lanesel = {x for x in parse_reg(ops[2]) if x[0] == "s"}
        if base == "v_div_fmas_f32": r.rs |= parse_reg("vcc")
        if r.dpp: add(r.rv, r.rs, parse_reg(ops[0]))
        return r
    if op.startswith("ds_"):
        r.kind = "ds"
        if op.startswith(("ds_read", "ds_bpermute", "ds_permute", "ds_swizzle")):
            add(r.wv, r.ws, parse_reg(ops[0]))
            if "d16" in op: add(r.rv, r.rs, parse_reg(ops[0]))
            for o in ops[1:]: add(r.rv, r.rs, parse_reg(o))
        else:
            for o in ops: add(r.rv, r.rs, parse_reg(o))
        return r
    if op.startswith(("buffer_", "global_")):
        r.kind = "vmem"
        if "load" in op:
            add(r.wv, r.ws, parse_reg(ops[0]))
            if "d16" in op: add(r.rv, r.rs, parse_reg(ops[0]))
            for o in ops[1:]: add(r.rv, r.rs, parse_reg(o))
        else:
            for o in ops: add(r.rv, r.rs, parse_reg(o))
            if op.endswith(("x3", "x4")):
                r.wide_store = True; r.data = parse_reg(ops[0])
        return r
    if op.startswith("s_"):
        r.kind = "salu"
        nodst = op.startswith(("s_cmp", "s_cbranch", "s_branch", "s_waitcnt", "s_barrier", "s_endpgm", "s_setprio", "s_sleep"))
        if not nodst and ops:
            add(r.wv, r.ws, parse_reg(ops[0]))
            for o in ops[1:]: add(r.rv, r.rs, parse_reg(o))
        else:
            for o in ops: add(r.rv, r.rs, parse_reg(o))
        return r
    raise ValueError("cannot classify: " + text)

XDL_AB = {2: 5, 4: 8, 8: 12, 16: 20}
XDL_COV = {2: 4, 4: 6, 8: 10, 16: 18}
XDL_V = {2: 5, 4: 8, 8: 12, 16: 20}
SG_AB = {2: 4, 4: 6, 8: 10, 16: 18}
SG_COV = {2: 2, 4: 4, 8: 8, 16: 16}
SG_V = {2: 4, 4: 6, 8: 10, 16: 18}
XDL_WAR = {2: 1, 4: 3, 8: 7, 16: 15}

def required(P, C):
    n = 0
    if P.kind == "valu":
        if C.kind == "mfma" and (P.wv & C.rv): n = max(n, 2)
        if P.trans and C.kind == "valu" and not C.trans and (P.wv & (C.rv | C.wv)): n = max(n, 1)
        if P.ws:
            if C.kind == "valu" and (P.ws & C.rs): n = max(n, 2)
            if C.kind == "valu" and (P.ws & C.lanesel): n = max(n, 4)
            if C.kind == "valu" and C.op.startswith("v_div_fmas") and (P.ws & C.rs): n = max(n, 4)
            if C.kind == "vmem" and (P.ws & C.rs): n = max(n, 5)
            if C.kind == "salu" and (P.ws & C.rs): n = max(n, 1)
        if P.wv & C.rv and C.kind == "valu":
            if C.op.startswith(("v_readlane", "v_readfirstlane")): n = max(n, 1)
            if C.dpp: n = max(n, 2)
            if C.op.startswith("v_permlane"): n = max(n, 2)
    if P.kind == "mfma":
        p = P.passes
        if C.kind == "mfma":
            if P.wv & C.srcab: n = max(n, (SG_AB if P.sgemm else XDL_AB)[p])
            if P.wv & C.srcc:
                if P.wv == C.srcc and P.sgemm == C.sgemm and P.passes == C.passes:
                    n = max(n, 2 if p == 2 else 0)
                else:
                    n = max(n, (SG_COV if P.sgemm else XDL_COV)[p])
            elif P.wv & C.wv:
                n = max(n, (SG_V if P.sgemm else XDL_V)[p])
        elif C.kind in ("valu", "vmem", "ds"):
            if P.wv & (C.rv | C.wv): n = max(n, (SG_V if P.sgemm else XDL_V)[p])
        if C.kind == "valu" and not P.sgemm and (P.srcc & C.wv): n = max(n, XDL_WAR[p])
    if P.kind == "vmem" and P.wide_store and (P.data & C.wv):
        n = max(n, 2 if C.kind == "valu" else 1)
    return n

class Asm:
    def __init__(self):
        self.out = []
        self.hist = []
        self.labels = {}
        self.nops_inserted = 0
    def raw(self, s):
        self.out.append(s)
    def _need(self, hist, rec):
        need = 0; dist = 0
        for P in reversed(hist):
            if dist >= 24: break
            q = required(P, rec)
            if q > dist: need = max(need, q - dist)
            dist += P.states
        return need
    def _nop(self, n):
        while n > 0:
            k = min(n, 16)
            t = "s_nop %d" % (k - 1)
            self.out.append("    " + t); self.hist.append(classify(t)); n -= k
            self.nops_inserted += 1
    def __call__(self, text):
        for line in text.strip().split("\n"):
            line = line.strip()
            if not line or line.startswith(";"):
                continue
            rec = classify(line)
            n = self._need(self.hist, rec)
            if n: self._nop(n)
            self.out.append("    " + line)
            self.hist.append(rec)
    def fence(self, n=20):
        self._nop(n)
    def label(self, name, fence=False):
        if fence: self.fence()
        self.out.append(name + ":")
        self.labels[name] = len(self.hist)
    def branch_back(self, op, name):
        start = self.labels[name]
        body = self.hist[start:start + 40]
        br = classify("%s %s" % (op, name))
        extra = 0
        while True:
            h = list(self.hist) + ([classify("s_nop %d" % (extra - 1))] if extra else []) + [br]
            ok = True
            for rec in body:
                if self._need(h, rec) > 0:
                    ok = False; break
                h.append(rec)
            if ok: break
            extra += 1
        if extra: self._nop(extra)
        self.out.append("    %s %s" % (op, name)); self.hist.append(br)
    def text(self):
        return "\n".join(self.out) + "\n"
```

```python
from asmlib import Asm
from gen import *

U_OFF = 256; U_RS = 160; KC_OFF = 7936; KC_CS = 4288
K2_LDS = KC_OFF + 8 * KC_CS
RED_WS = 8704; RED_RS = 272
def gen_k2(a):
    kernel_header(a, "k2_kernel")
    a("""
    s_cmp_ge_u32 s2, 864
    s_cbranch_scc1 K2_END
    s_cmp_ge_u32 s2, 512
    s_cbranch_scc1 K2_TR
    s_load_dwordx2 s[14:15], s[0:1], 112
    s_load_dwordx2 s[12:13], s[0:1], 48
    s_lshl_b32 s3, s2, 12
    v_lshlrev_b32 v1, 4, v0
    v_add_u32 v1, s3, v1
    v_lshrrev_b32 v2, 1, v0
    v_lshlrev_b32 v2, 14, v2
    v_and_b32 v3, 1, v0
    v_lshl_add_u32 v2, v3, 4, v2
    s_lshl_b32 s3, s2, 5
    v_add_u32 v2, s3, v2
    s_lshl_b32 s3, s2, 2
    v_mov_b32 v3, s3
    s_lshl_b32 s3, s2, 1
    v_mov_b32 v4, s3
    s_waitcnt lgkmcnt(0)
    """)
    srd(a, 16, 14, 15, D * L * 2, WS_R16); srd(a, 20, 14, 15, D * L * 2, WS_UT); srd(a, 24, 14, 15, D * 4, WS_SCL)
    srd(a, 28, 12, 13, D * 2); srd(a, 32, 14, 15, D * L * 2, WS_T3)
    a("""
    buffer_load_dwordx4 v[16:19], v1, s[16:19], 0 offen
    buffer_load_dwordx4 v[20:23], v1, s[16:19], 0 offen offset:16
    buffer_load_dwordx4 v[24:27], v2, s[20:23], 0 offen
    buffer_load_dword v28, v3, s[24:27], 0 offen
    buffer_load_ushort v29, v4, s[28:31], 0 offen
    v_mov_b32 v40, 0
    v_mov_b32 v41, 0
    v_mov_b32 v42, 0
    v_mov_b32 v43, 0
    v_lshlrev_b32 v5, 4, v0
    v_cmp_gt_u32 vcc, 166, v0
    s_and_saveexec_b64 s[40:41], vcc
    ds_write_b128 v5, v[40:43]
    s_mov_b64 exec, s[40:41]
    v_lshrrev_b32 v6, 3, v0
    v_mul_u32_u24 v6, %d, v6
    v_and_b32 v7, 7, v0
    v_lshl_add_u32 v6, v7, 4, v6
    v_cmp_gt_u32 vcc, 64, v0
    s_and_saveexec_b64 s[40:41], vcc
    ds_write_b128 v6, v[40:43] offset:%d
    s_mov_b64 exec, s[40:41]
    """ % (KC_CS, KC_OFF + 4096))
    a("""
    v_and_b32 v8, 15, v0
    v_bfe_u32 v9, v0, 4, 2
    v_lshrrev_b32 v10, 6, v0
    v_cmp_eq_u32 vcc, 255, v0
    s_waitcnt vmcnt(3)
    v_cndmask_b32 v20, v20, 0, vcc
    v_cndmask_b32 v21, v21, 0, vcc
    v_cndmask_b32 v22, v22, 0, vcc
    v_cndmask_b32 v23, v23, 0, vcc
    """)
    for k in range(7):
        a(f"v_alignbit_b32 v{32+k}, v{17+k}, v{16+k}, 16")
    for j in range(4):
        a(f"v_mov_b32 v{48+j}, v{17+j}")
        a(f"v_mov_b32 v{52+j}, v{19+j}")
        a(f"v_mov_b32 v{56+j}, v{33+j}")
        a(f"v_mov_b32 v{60+j}, v{35+j}")
    srcs = {0: 16, 1: 32, 2: 48, 3: 56, 4: 18, 5: 34, 6: 52, 7: 60}
    for c in range(8):
        a(f"ds_write_b128 v5, v[{srcs[c]}:{srcs[c]+3}] offset:{KC_OFF + c*KC_CS}")
    a("s_waitcnt vmcnt(2)")
    for j in range(4):
        a(f"""
        v_lshlrev_b32 v44, 16, v{24+j}
        v_and_b32 v45, 0xffff0000, v{24+j}
        v_cvt_pkrtz_f16_f32 v{40+j}, v44, v45
        """)
    a(f"""
    v_lshrrev_b32 v6, 3, v0
    v_mul_u32_u24 v6, {U_RS}, v6
    v_lshl_add_u32 v6, v7, 4, v6
    ds_write_b128 v6, v[40:43] offset:{U_OFF + 15*U_RS}
    v_readfirstlane_b32 s42, v10
    """)
    a("""
    s_mul_i32 s43, s42, 6
    s_cmp_eq_u32 s42, 3
    s_cselect_b32 s44, 2, 0
    s_add_u32 s43, s43, s44
    s_cmp_lt_u32 s42, 2
    s_cselect_b32 s45, 3, 2
    s_cmp_eq_u32 s42, 3
    s_cselect_b32 s45, 0, s45
    s_cmp_lt_u32 s42, 2
    s_cselect_b32 s46, 0, 2
    s_cmp_eq_u32 s42, 3
    s_cselect_b32 s46, 6, s46
    """)
    a(f"""
    v_and_b32 v13, 7, v8
    v_sub_u32 v13, 7, v13
    v_mul_u32_u24 v11, {KC_CS}, v13
    v_lshrrev_b32 v13, 3, v8
    v_sub_u32 v13, v9, v13
    v_lshl_add_u32 v11, v13, 4, v11
    s_lshl_b32 s47, s43, 7
    s_sub_u32 s47, {KC_OFF + 4080 - 96}, s47
    v_add_u32 v11, s47, v11
    v_mul_u32_u24 v12, {U_RS}, v8
    v_lshl_add_u32 v12, v9, 4, v12
    s_mul_i32 s47, s43, {U_RS}
    s_sub_u32 s47, {U_OFF + 15*U_RS}, s47
    v_add_u32 v12, s47, v12
    """)
    for r in range(32):
        a(f"v_mov_b32 v{112+r}, 0")
    a("s_waitcnt lgkmcnt(0)\ns_barrier")
    SET = [dict(F=48, G=64), dict(F=80, G=96)]
    def Fr(s, al): b = SET[s]["F"] + 4 * al; return f"v[{b}:{b+3}]"
    def Gr(s, c, be): b = SET[s]["G"] + 8 * c + 4 * be; return f"v[{b}:{b+3}]"
    def acc(c, al): b = 112 + 16 * c + 4 * al; return f"v[{b}:{b+3}]"
    def loads(s, cs):
        for al in range(4):
            a(f"ds_read_b128 {Fr(s, al)}, v11 offset:{96 - 32*al}")
        for c in cs:
            for be in range(2):
                a(f"ds_read_b128 {Gr(s, c, be)}, v12 offset:{2560*c + 64*be}")
    def mf(c, al, fa, gb):
        a(f"v_mfma_f32_16x16x32_f16 {acc(c, al)}, {fa}, {gb}, {acc(c, al)}")
    def iteration(s, cs):
        o = 1 - s
        a("s_waitcnt lgkmcnt(0)")
        for c in cs:
            mf(c, 0, Fr(o, 2), Gr(s, c, 1))
            mf(c, 1, Fr(o, 3), Gr(s, c, 1))
        a(f"v_subrev_u32 v11, 128, v11\nv_subrev_u32 v12, {U_RS}, v12")
        loads(o, cs)
        for c in cs:
            for al in range(4):
                mf(c, al, Fr(s, al), Gr(s, c, 0))
        for c in cs:
            mf(c, 2, Fr(s, 0), Gr(s, c, 1))
            mf(c, 3, Fr(s, 1), Gr(s, c, 1))
    a(f"ds_read_b128 {Fr(1, 2)}, v11 offset:160")
    a(f"ds_read_b128 {Fr(1, 3)}, v11 offset:128")
    loads(0, [0, 1])
    a("s_cmp_eq_u32 s45, 0\ns_cbranch_scc1 K2_L1PRE")
    a.label("K2_L2")
    iteration(0, [0, 1]); iteration(1, [0, 1])
    a("s_sub_u32 s45, s45, 1\ns_cmp_lg_u32 s45, 0")
    a.branch_back("s_cbranch_scc1", "K2_L2")
    a.label("K2_L1PRE")
    a("s_cmp_eq_u32 s46, 0\ns_cbranch_scc1 K2_RED")
    a.label("K2_L1")
    iteration(0, [1]); iteration(1, [1])
    a("s_sub_u32 s46, s46, 1\ns_cmp_lg_u32 s46, 0")
    a.branch_back("s_cbranch_scc1", "K2_L1")
    a.label("K2_RED", fence=False)
    a("s_waitcnt lgkmcnt(0)")
    a.fence(12)
    a(f"""
    s_barrier
    v_mul_u32_u24 v13, {RED_WS}, v10
    v_mul_u32_u24 v14, {RED_RS}, v8
    v_add_u32 v13, v13, v14
    v_lshl_add_u32 v13, v9, 4, v13
    """)
    for c in range(2):
        for al in range(4):
            a(f"ds_write_b128 v13, {acc(c, al)} offset:{16*c*RED_RS + 64*al}")
    a(f"""
    s_waitcnt lgkmcnt(0)
    s_barrier
    v_lshrrev_b32 v13, 3, v0
    v_mul_u32_u24 v13, {RED_RS}, v13
    v_lshl_add_u32 v13, v7, 5, v13
    """)
    for w in range(4):
        a(f"ds_read_b128 v[{48+8*w}:{51+8*w}], v13 offset:{RED_WS*w}")
        a(f"ds_read_b128 v[{52+8*w}:{55+8*w}], v13 offset:{RED_WS*w+16}")
    a("v_lshlrev_b32 v29, 16, v29\ns_waitcnt lgkmcnt(0)")
    for e in range(8):
        a(f"v_add_f32 v{48+e}, v{48+e}, v{56+e}\nv_add_f32 v{64+e}, v{64+e}, v{72+e}")
    for e in range(8):
        a(f"v_add_f32 v{48+e}, v{48+e}, v{64+e}")
    for e in range(8):
        a(f"v_mul_f32 v{48+e}, v{48+e}, v28")
    for j in range(4):
        x, y = 48 + 2 * j, 49 + 2 * j
        bf16r_pair(a, x, y, 44)
        a(f"""
        v_lshlrev_b32 v45, 16, v{24+j}
        v_and_b32 v46, 0xffff0000, v{24+j}
        v_mul_f32 v45, v45, v29
        v_mul_f32 v46, v46, v29
        """)
        bf16r_pair(a, 45, 46, 44)
        a(f"""
        v_add_f32 v{x}, v{x}, v45
        v_add_f32 v{y}, v{y}, v46
        v_cvt_pk_bf16_f32 v{56+j}, v{x}, v{y}
        """)
    a("buffer_store_dwordx4 v[56:59], v2, s[32:35], 0 offen\ns_endpgm")
    a.label("K2_TR")
    a.hist = []
    a("""
    s_load_dwordx2 s[4:5], s[0:1], 64
    s_load_dwordx2 s[6:7], s[0:1], 80
    s_load_dwordx2 s[14:15], s[0:1], 112
    s_sub_u32 s3, s2, 512
    s_waitcnt lgkmcnt(0)
    s_cmp_ge_u32 s3, 176
    s_cbranch_scc1 K2_TR2
    """)
    srd(a, 16, 4, 5, D * F * 2); srd(a, 20, 14, 15, F * D * 2, WS_W1T)
    a("""
    s_and_b32 s40, s3, 7
    s_lshr_b32 s41, s3, 3
    s_mov_b32 s42, %d
    s_mov_b32 s43, %d
    s_branch K2_TRC
    """ % (F * 2, D * 2))
    a.label("K2_TR2")
    srd(a, 16, 6, 7, F * D * 2); srd(a, 20, 14, 15, D * FP * 2, WS_W2T)
    a("""
    s_sub_u32 s3, s3, 176
    s_and_b32 s41, s3, 7
    s_lshr_b32 s40, s3, 3
    s_mov_b32 s42, %d
    s_mov_b32 s43, %d
    """ % (D * 2, FP * 2))
    a.label("K2_TRC")
    a("""
    v_lshrrev_b32 v1, 3, v0
    v_and_b32 v2, 7, v0
    s_lshl_b32 s44, s40, 6
    v_add_u32 v3, s44, v1
    v_mul_lo_u32 v3, v3, s42
    s_lshl_b32 s45, s41, 7
    v_lshl_add_u32 v3, v2, 4, v3
    v_add_u32 v3, s45, v3
    s_lshl_b32 s46, s42, 5
    v_add_u32 v4, s46, v3
    buffer_load_dwordx4 v[8:11], v3, s[16:19], 0 offen
    buffer_load_dwordx4 v[12:15], v4, s[16:19], 0 offen
    v_mul_u32_u24 v5, 144, v1
    v_lshl_add_u32 v5, v2, 4, v5
    v_lshrrev_b32 v6, 2, v0
    v_and_b32 v7, 3, v0
    v_mul_u32_u24 v16, 2304, v7
    v_lshl_add_u32 v16, v6, 1, v16
    s_lshl_b32 s45, s41, 6
    v_add_u32 v17, s45, v6
    v_mul_lo_u32 v17, v17, s43
    s_lshl_b32 s44, s40, 7
    v_lshl_add_u32 v17, v7, 5, v17
    v_add_u32 v17, s44, v17
    s_waitcnt vmcnt(0)
    ds_write_b128 v5, v[8:11]
    ds_write_b128 v5, v[12:15] offset:4608
    s_waitcnt lgkmcnt(0)
    s_barrier
    """)
    for e in range(16):
        a(f"ds_read_u16 v{32 + e}, v16 offset:{144*e}")
    a("s_waitcnt lgkmcnt(0)")
    for e in range(8):
        a(f"v_lshl_or_b32 v{20+e}, v{33+2*e}, 16, v{32+2*e}")
    a("""
    buffer_store_dwordx4 v[20:23], v17, s[20:23], 0 offen
    buffer_store_dwordx4 v[24:27], v17, s[20:23], 0 offen offset:16
    """)
    a.label("K2_END")
    a("s_endpgm")
    return kd("k2_kernel", 144)

K3_LDS = 17408
def gen_k3(a):
    kernel_header(a, "k3_kernel")
    a("""
    s_cmp_ge_u32 s2, 128
    s_cbranch_scc1 K3_END
    s_load_dwordx2 s[4:5], s[0:1], 0
    s_load_dwordx2 s[14:15], s[0:1], 112
    s_mov_b32 s50, 0x3727c5ac
    s_mov_b32 s51, 0x3b000000
    v_and_b32 v1, 63, v0
    v_lshrrev_b32 v2, 6, v0
    s_lshl_b32 s6, s2, 14
    v_lshlrev_b32 v3, 12, v2
    v_lshl_add_u32 v3, v1, 4, v3
    v_add_u32 v3, s6, v3
    v_lshlrev_b32 v7, 4, v0
    v_add_u32 v7, s6, v7
    s_waitcnt lgkmcnt(0)
    """)
    srd(a, 16, 4, 5, L * D * 2); srd(a, 20, 14, 15, L * D * 2, WS_T3)
    srd(a, 24, 14, 15, L * D * 2, WS_H); srd(a, 28, 14, 15, L * D * 2, WS_Z)
    for i in range(4):
        if i: a("v_add_u32 v7, 4096, v7")
        a(f"buffer_load_dwordx4 v[{96+4*i}:{99+4*i}], v7, s[20:23], 0 offen")
    for k in range(4):
        a(f"buffer_load_dwordx4 v[{16+4*k}:{19+4*k}], v3, s[16:19], 0 offen offset:{1024*k}")
    a("""
    v_lshrrev_b32 v5, 1, v0
    v_lshlrev_b32 v6, 5, v5
    v_lshrrev_b32 v5, 3, v5
    v_lshl_add_u32 v6, v5, 3, v6
    v_and_b32 v5, 1, v0
    v_lshl_add_u32 v6, v5, 4, v6
    v_mul_u32_u24 v4, 264, v1
    v_lshl_add_u32 v4, v2, 3, v4
    s_waitcnt vmcnt(4)
    """)
    for i in range(4):
        a(f"ds_write_b64 v6, v[{96+4*i}:{97+4*i}] offset:{4224*i}")
        a(f"ds_write_b64 v6, v[{98+4*i}:{99+4*i}] offset:{4224*i+8}")
    a("s_waitcnt lgkmcnt(0)\ns_barrier")
    for c in range(8):
        a(f"ds_read_b64 v[{96+2*c}:{97+2*c}], v4 offset:{32*c}")
    a("s_waitcnt vmcnt(0) lgkmcnt(0)")
    for k in range(4):
        for e in range(4):
            a(f"v_lshlrev_b32 v{32+8*k+2*e}, 16, v{16+4*k+e}")
            a(f"v_and_b32 v{33+8*k+2*e}, 0xffff0000, v{16+4*k+e}")
    for c in range(8):
        a(f"""
        v_lshlrev_b32 v64, 16, v{96+2*c}
        v_and_b32 v65, 0xffff0000, v{96+2*c}
        v_lshlrev_b32 v66, 16, v{97+2*c}
        v_and_b32 v67, 0xffff0000, v{97+2*c}
        v_add_f32 v{32+c}, v{32+c}, v64
        v_add_f32 v{40+c}, v{40+c}, v65
        v_add_f32 v{48+c}, v{48+c}, v66
        v_add_f32 v{56+c}, v{56+c}, v67
        """)
    for k in range(4):
        for e in range(4):
            x, y, t = 32 + 8 * k + 2 * e, 33 + 8 * k + 2 * e, 16 + 4 * k + e
            a(f"v_cvt_pk_bf16_f32 v{t}, v{x}, v{y}")
            a(f"v_lshlrev_b32 v{x}, 16, v{t}")
            a(f"v_and_b32 v{y}, 0xffff0000, v{t}")
    for k in range(4):
        a(f"buffer_store_dwordx4 v[{16+4*k}:{19+4*k}], v3, s[24:27], 0 offen offset:{1024*k}")
    layernorm4(a, 32, 64, 50, 51)
    layernorm4(a, 32, 64, 50, 51)
    for k in range(4):
        for e in range(4):
            a(f"v_cvt_pk_bf16_f32 v{96+4*k+e}, v{32+8*k+2*e}, v{33+8*k+2*e}")
    for k in range(4):
        a(f"buffer_store_dwordx4 v[{96+4*k}:{99+4*k}], v3, s[28:31], 0 offen offset:{1024*k}")
    a.label("K3_END")
    a("s_endpgm")
    return kd("k3_kernel", 112)
```

```python
from asmlib import Asm
from gen import *

def gen_gemm(a, name, *, RT, CT, BK, NST, n_rt, n_ct, r_ws, r_bytes, r_ld, c_ws, c_bytes, c_ld, epilogue, last_c_limit=None):
    SL = BK // 8
    ROWB = BK * 2
    RBUF = RT * ROWB; CBUF = CT * ROWB; STG = RBUF + CBUF
    lds = 2 * STG
    rp = RT * SL // 256; cp = CT * SL // 256
    assert rp * 256 == RT * SL and cp * 256 == CT * SL
    rows_per_pass = 256 // SL
    fr = RT // 32; fc = CT // 32
    KS = BK // 32
    NP = rp + cp
    ACC = 16; nacc = fr * fc * 4
    FRG = ACC + nacc
    nfr = (fr + fc) * 4
    STGR = FRG + 2 * nfr
    ADDR = STGR + 2 * NP * 4
    vtop = ADDR + 16
    kernel_header(a, name)
    nwg = n_rt * n_ct
    a(f"""
    s_cmp_ge_u32 s2, {nwg}
    s_cbranch_scc1 {name}_END
    s_load_dwordx2 s[14:15], s[0:1], 112
    s_load_dwordx4 s[4:7], s[0:1], 72
    s_load_dwordx4 s[8:11], s[0:1], 88
    s_and_b32 s40, s2, {n_ct - 1}
    s_lshr_b32 s41, s2, {n_ct.bit_length() - 1}
    v_and_b32 v1, {SL - 1}, v0
    v_lshrrev_b32 v2, {SL.bit_length() - 1}, v0
    s_waitcnt lgkmcnt(0)
    """)
    srd(a, 16, 14, 15, r_bytes, r_ws); srd(a, 20, 14, 15, c_bytes, c_ws)
    vRA = ADDR; vCA = ADDR + 1; vW = ADDR + 2; vRF = ADDR + 3; vCF = ADDR + 4; vCL = ADDR + 5
    a(f"""
    s_mul_i32 s42, s41, {RT}
    v_add_u32 v3, s42, v2
    s_mov_b32 s43, {r_ld}
    v_mul_lo_u32 v3, v3, s43
    v_lshl_add_u32 v{vRA}, v1, 4, v3
    s_mul_i32 s42, s40, {CT}
    v_add_u32 v3, s42, v2
    s_mov_b32 s43, {c_ld}
    v_mul_lo_u32 v3, v3, s43
    v_lshl_add_u32 v{vCA}, v1, 4, v3
    """)
    xm = min(SL, 16) - 1
    assert rows_per_pass % (xm + 1) == 0
    a(f"""
    v_and_b32 v3, {xm}, v2
    v_xor_b32 v3, v3, v1
    v_lshlrev_b32 v3, 4, v3
    v_mul_u32_u24 v4, {ROWB}, v2
    v_add_u32 v{vW}, v3, v4
    """)
    a(f"""
    v_and_b32 v5, 15, v0
    v_bfe_u32 v6, v0, 4, 2
    v_bfe_u32 v7, v0, 7, 1
    v_bfe_u32 v8, v0, 6, 1
    """)
    for ks in range(KS):
        a(f"""
        v_and_b32 v9, {xm}, v5
        v_xor_b32 v9, v9, v6
        v_xor_b32 v9, {4*ks}, v9
        v_lshlrev_b32 v9, 4, v9
        v_mul_u32_u24 v10, {RT//2}, v7
        v_add_u32 v10, v10, v5
        v_mul_u32_u24 v10, {ROWB}, v10
        v_add_u32 v{ADDR + 6 + ks}, v9, v10
        v_mul_u32_u24 v10, {CT//2}, v8
        v_add_u32 v10, v10, v5
        v_mul_u32_u24 v10, {ROWB}, v10
        v_add_u32 v10, v9, v10
        v_add_u32 v{ADDR + 6 + KS + ks}, {RBUF}, v10
        """)
    assert 6 + 2 * KS <= 16
    if last_c_limit is not None:
        a(f"""
        v_cmp_le_u32 vcc, {last_c_limit}, v1
        v_mov_b32 v3, 0x40000000
        v_cndmask_b32 v3, 0, v3, vcc
        v_add_u32 v{vCL}, v{vCA}, v3
        """)
    for r in range(nacc):
        a(f"v_mov_b32 v{ACC + r}, 0")
    def stg(s, p): b = STGR + (s & 1) * NP * 4 + 4 * p; return f"v[{b}:{b+3}]"
    def gload(s):
        koff = s * ROWB
        for p in range(rp):
            off = koff + p * rows_per_pass * r_ld
            so = off & ~0xfff if off > 4095 else 0
            if so:
                a(f"s_mov_b32 s44, {so}")
                a(f"buffer_load_dwordx4 {stg(s, p)}, v{vRA}, s[16:19], s44 offen offset:{off - so}")
            else:
                a(f"buffer_load_dwordx4 {stg(s, p)}, v{vRA}, s[16:19], 0 offen offset:{off}")
        va = vCL if (last_c_limit is not None and s == NST - 1) else vCA
        for p in range(cp):
            off = koff + p * rows_per_pass * c_ld
            so = off & ~0xfff if off > 4095 else 0
            if so:
                a(f"s_mov_b32 s44, {so}")
                a(f"buffer_load_dwordx4 {stg(s, rp + p)}, v{va}, s[20:23], s44 offen offset:{off - so}")
            else:
                a(f"buffer_load_dwordx4 {stg(s, rp + p)}, v{va}, s[20:23], 0 offen offset:{off}")
    def lwrite(s):
        base = (s & 1) * STG
        for p in range(rp):
            a(f"ds_write_b128 v{vW}, {stg(s, p)} offset:{base + p * rows_per_pass * ROWB}")
        for p in range(cp):
            a(f"ds_write_b128 v{vW}, {stg(s, rp + p)} offset:{base + RBUF + p * rows_per_pass * ROWB}")
    def frg(st, j): b = FRG + st * nfr + 4 * j; return f"v[{b}:{b+3}]"
    def fread(s, ks):
        base = (s & 1) * STG
        for t in range(fr):
            a(f"ds_read_b128 {frg(ks & 1, t)}, v{ADDR + 6 + ks} offset:{base + 16 * t * ROWB}")
        for t in range(fc):
            a(f"ds_read_b128 {frg(ks & 1, fr + t)}, v{ADDR + 6 + KS + ks} offset:{base + 16 * t * ROWB}")
    def accr(i, j): b = ACC + 4 * (i * fc + j); return f"v[{b}:{b+3}]"
    def mfmas(ks):
        for i in range(fr):
            for j in range(fc):
                a(f"v_mfma_f32_16x16x32_bf16 {accr(i, j)}, {frg(ks & 1, i)}, {frg(ks & 1, fr + j)}, {accr(i, j)}")
    nf = fr + fc
    gload(0)
    if NST > 1: gload(1)
    a(f"s_waitcnt vmcnt({NP if NST > 1 else 0})")
    lwrite(0)
    if NST > 2: gload(2)
    a("s_waitcnt lgkmcnt(0)")
    for s in range(NST):
        a("s_barrier")
        fread(s, 0)
        if KS > 1: fread(s, 1)
        for ks in range(KS):
            last = (ks == KS - 1)
            if ks == 0:
                a(f"s_waitcnt lgkmcnt({nf if KS > 1 else 0})")
            mfmas(ks)
            if ks == 0 and s + 1 < NST:
                outstanding_after = min(NST - 1, s + 2) - (s + 1)
                a(f"s_waitcnt vmcnt({NP * outstanding_after})")
                lwrite(s + 1)
                if s + 3 < NST: gload(s + 3)
                nw = NP
            elif ks == 0:
                nw = 0
            if not last:
                if ks + 2 < KS:
                    fread(s, ks + 2)
                    a(f"s_waitcnt lgkmcnt({nf + (nw if ks == 0 else 0)})" if False else f"s_waitcnt lgkmcnt({nf})")
                else:
                    a(f"s_waitcnt lgkmcnt({nw if ks == 0 else 0})")
        a("s_waitcnt lgkmcnt(0)")
    epilogue(a, dict(ACC=ACC, fr=fr, fc=fc, RT=RT, CT=CT, FRG=FRG, STGR=STGR, ADDR=ADDR))
    a.label(f"{name}_END")
    a("s_endpgm")
    return kd(name, vtop), lds

def epi_k4(a, P):
    ACC, fr, fc, RT, CT = P["ACC"], P["fr"], P["fc"], P["RT"], P["CT"]
    T = P["FRG"]
    srd(a, 24, 4, 5, F * 2)
    srd(a, 28, 14, 15, L * F * 2, WS_HH)
    a(f"""
    s_mul_i32 s42, s41, {RT}
    v_mul_u32_u24 v9, {RT//2}, v7
    v_lshl_add_u32 v9, v6, 2, v9
    v_add_u32 v9, s42, v9
    s_mul_i32 s42, s40, {CT}
    v_mul_u32_u24 v10, {CT//2}, v8
    v_add_u32 v10, v10, v5
    v_add_u32 v10, s42, v10
    s_mov_b32 s43, {F*2}
    v_mul_lo_u32 v10, v10, s43
    v_lshlrev_b32 v11, 1, v9
    v_add_u32 v10, v10, v11
    s_mov_b32 s45, 0x3d372713
    s_mov_b32 s46, 0xc0135761
    """)
    for i in range(fr):
        a(f"buffer_load_dwordx2 v[{T+2*i}:{T+2*i+1}], v11, s[24:27], 0 offen offset:{32*i}")
    a("s_waitcnt vmcnt(0)")
    B = T + 8
    for i in range(fr):
        a(f"""
        v_lshlrev_b32 v{B+4*i}, 16, v{T+2*i}
        v_and_b32 v{B+4*i+1}, 0xffff0000, v{T+2*i}
        v_lshlrev_b32 v{B+4*i+2}, 16, v{T+2*i+1}
        v_and_b32 v{B+4*i+3}, 0xffff0000, v{T+2*i+1}
        """)
    W = B + 4 * fr
    for i in range(fr):
        a(f"""
        v_add_u32 v12, {16*i}, v9
        v_cmp_gt_u32 vcc, {F}, v12
        s_and_saveexec_b64 s[48:49], vcc
        """)
        for j in range(fc):
            b = ACC + 4 * (i * fc + j)
            for h in range(2):
                x, y = b + 2 * h, b + 2 * h + 1
                bf16r_pair(a, x, y, W)
                a(f"v_add_f32 v{x}, v{x}, v{B+4*i+2*h}\nv_add_f32 v{y}, v{y}, v{B+4*i+2*h+1}")
                bf16r_pair(a, x, y, W)
                a(f"""
                v_mul_f32 v{W}, v{x}, v{x}
                v_mul_f32 v{W+1}, v{y}, v{y}
                v_mul_f32 v{W}, s45, v{W}
                v_mul_f32 v{W+1}, s45, v{W+1}
                v_fma_f32 v{W}, v{W}, v{x}, v{x}
                v_fma_f32 v{W+1}, v{W+1}, v{y}, v{y}
                v_mul_f32 v{W}, s46, v{W}
                v_mul_f32 v{W+1}, s46, v{W+1}
                v_exp_f32 v{W}, v{W}
                v_exp_f32 v{W+1}, v{W+1}
                v_add_f32 v{W}, 1.0, v{W}
                v_add_f32 v{W+1}, 1.0, v{W+1}
                v_rcp_f32 v{W}, v{W}
                v_rcp_f32 v{W+1}, v{W+1}
                v_mul_f32 v{x}, v{x}, v{W}
                v_mul_f32 v{y}, v{y}, v{W+1}
                v_cvt_pk_bf16_f32 v{W+2+h}, v{x}, v{y}
                """)
            off = 16 * j * F * 2 + 32 * i
            so = off & ~0xfff
            if so:
                a(f"s_mov_b32 s44, {so}")
                a(f"buffer_store_dwordx2 v[{W+2}:{W+3}], v10, s[28:31], s44 offen offset:{off - so}")
            else:
                a(f"buffer_store_dwordx2 v[{W+2}:{W+3}], v10, s[28:31], 0 offen offset:{off}")
        a("s_mov_b64 exec, s[48:49]")

def epi_k5(a, P):
    ACC, fr, fc, RT, CT = P["ACC"], P["fr"], P["fc"], P["RT"], P["CT"]
    T = P["FRG"]
    srd(a, 24, 8, 9, D * 2)
    srd(a, 28, 14, 15, L * D * 2, WS_H)
    srd(a, 32, 10, 11, L * D * 2)
    a(f"""
    s_mul_i32 s42, s41, {RT}
    v_mul_u32_u24 v9, {RT//2}, v7
    v_lshl_add_u32 v9, v6, 2, v9
    v_add_u32 v9, s42, v9
    s_mul_i32 s42, s40, {CT}
    v_mul_u32_u24 v10, {CT//2}, v8
    v_add_u32 v10, v10, v5
    v_add_u32 v10, s42, v10
    v_lshlrev_b32 v10, 10, v10
    v_lshlrev_b32 v11, 1, v9
    v_add_u32 v10, v10, v11
    """)
    for i in range(fr):
        a(f"buffer_load_dwordx2 v[{T+2*i}:{T+2*i+1}], v11, s[24:27], 0 offen offset:{32*i}")
    Hh = T + 8
    for i in range(fr):
        for j in range(fc):
            q = Hh + 2 * (i * fc + j)
            off = 16 * j * 1024 + 32 * i
            so = off & ~0xfff
            if so:
                a(f"s_mov_b32 s44, {so}")
                a(f"buffer_load_dwordx2 v[{q}:{q+1}], v10, s[28:31], s44 offen offset:{off - so}")
            else:
                a(f"buffer_load_dwordx2 v[{q}:{q+1}], v10, s[28:31], 0 offen offset:{off}")
    a("s_waitcnt vmcnt(0)")
    W = Hh + 2 * fr * fc
    for i in range(fr):
        for j in range(fc):
            b = ACC + 4 * (i * fc + j); q = Hh + 2 * (i * fc + j)
            for h in range(2):
                x, y = b + 2 * h, b + 2 * h + 1
                bf16r_pair(a, x, y, W)
                a(f"""
                v_lshlrev_b32 v{W}, 16, v{T+2*i+h}
                v_and_b32 v{W+1}, 0xffff0000, v{T+2*i+h}
                v_add_f32 v{x}, v{x}, v{W}
                v_add_f32 v{y}, v{y}, v{W+1}
                """)
                bf16r_pair(a, x, y, W)
                a(f"""
                v_lshlrev_b32 v{W}, 16, v{q+h}
                v_and_b32 v{W+1}, 0xffff0000, v{q+h}
                v_add_f32 v{x}, v{x}, v{W}
                v_add_f32 v{y}, v{y}, v{W+1}
                v_cvt_pk_bf16_f32 v{q+h}, v{x}, v{y}
                """)
            off = 16 * j * 1024 + 32 * i
            so = off & ~0xfff
            if so:
                a(f"s_mov_b32 s44, {so}")
                a(f"buffer_store_dwordx2 v[{q}:{q+1}], v10, s[32:35], s44 offen offset:{off - so}")
            else:
                a(f"buffer_store_dwordx2 v[{q}:{q+1}], v10, s[32:35], 0 offen offset:{off}")

def gen_k4(a):
    return gen_gemm(a, "k4_kernel", RT=96, CT=128, BK=64, NST=8, n_rt=15, n_ct=16,
                    r_ws=WS_W1T, r_bytes=F * D * 2, r_ld=D * 2, c_ws=WS_Z, c_bytes=L * D * 2, c_ld=D * 2, epilogue=epi_k4)
def gen_k5(a):
    return gen_gemm(a, "k5_kernel", RT=64, CT=64, BK=128, NST=11, n_rt=8, n_ct=32,
                    r_ws=WS_W2T, r_bytes=D * FP * 2, r_ld=FP * 2, c_ws=WS_HH, c_bytes=L * F * 2, c_ld=F * 2,
                    epilogue=epi_k5, last_c_limit=12)
```

```python
import sys
sys.path.insert(0, "gen")
from asmlib import Asm

L = 2048; D = 512; N = 128; F = 1376; FP = 1408
WS_UT = 0x000000; WS_R16 = 0x200000; WS_SCL = 0x400000; WS_T3 = 0x500000; WS_H = 0x700000
WS_Z = 0x900000; WS_W1T = 0xB00000; WS_W2T = 0xD00000; WS_HH = 0xF00000
L2E = 0x3fb8aa3b; L2E_LO = 0x32a57060; LN2 = 0x3f317218; INV2PI = 0x3e22f983

def srd(a, sd, lo, hi, nbytes, off=0):
    if off:
        a(f"s_add_u32 s{sd}, s{lo}, 0x{off:x}")
        a(f"s_addc_u32 s{sd+1}, s{hi}, 0")
    else:
        a(f"s_mov_b32 s{sd}, s{lo}")
        a(f"s_mov_b32 s{sd+1}, s{hi}")
    a(f"s_mov_b32 s{sd+2}, 0x{nbytes:x}")
    a(f"s_mov_b32 s{sd+3}, 0x00020000")

def allreduce(a, regs, tmps, op="v_add_f32"):
    for n in (8, 4, 2, 1):
        for r in regs:
            a(f"{op}_dpp v{r}, v{r}, v{r} row_ror:{n} row_mask:0xf bank_mask:0xf")
    for sw in ("v_permlane16_swap_b32", "v_permlane32_swap_b32"):
        for r, t in zip(regs, tmps):
            a(f"v_mov_b32 v{t}, v{r}")
        for r, t in zip(regs, tmps):
            a(f"{sw} v{r}, v{t}")
        for r, t in zip(regs, tmps):
            a(f"{op} v{r}, v{r}, v{t}")

def bf16r_pair(a, x, y, t):
    a(f"v_cvt_pk_bf16_f32 v{t}, v{x}, v{y}")
    a(f"v_lshlrev_b32 v{x}, 16, v{t}")
    a(f"v_and_b32 v{y}, 0xffff0000, v{t}")

def layernorm4(a, V, S, sEps, sInvD):
    sm = [S + i for i in range(4)]; tm = [S + 4 + i for i in range(4)]
    q = [S + 8 + i for i in range(4)]; rr = [S + 12 + i for i in range(4)]
    sd = [S + 16 + i for i in range(4)]; t0 = S + 20; t1 = S + 21; t2 = S + 22; t3 = S + 23
    for k in range(4):
        b = V + 8 * k
        a(f"v_add_f32 v{sm[k]}, v{b}, v{b+1}")
        a(f"v_add_f32 v{tm[k]}, v{b+2}, v{b+3}")
        a(f"v_add_f32 v{q[k]}, v{b+4}, v{b+5}")
        a(f"v_add_f32 v{rr[k]}, v{b+6}, v{b+7}")
    for k in range(4):
        a(f"v_add_f32 v{sm[k]}, v{sm[k]}, v{tm[k]}")
        a(f"v_add_f32 v{q[k]}, v{q[k]}, v{rr[k]}")
    for k in range(4):
        a(f"v_add_f32 v{sm[k]}, v{sm[k]}, v{q[k]}")
    allreduce(a, sm, tm)
    for k in range(4):
        a(f"v_mul_f32 v{sm[k]}, s{sInvD}, v{sm[k]}")
    for k in range(4):
        b = V + 8 * k
        for c in range(8):
            a(f"v_sub_f32 v{tm[k]}, v{b+c}, v{sm[k]}")
            if c == 0: a(f"v_mul_f32 v{q[k]}, v{tm[k]}, v{tm[k]}")
            else: a(f"v_fmac_f32 v{q[k]}, v{tm[k]}, v{tm[k]}")
    allreduce(a, q, tm)
    for k in range(4):
        a(f"v_mul_f32 v{q[k]}, s{sInvD}, v{q[k]}")
    for k in range(4):
        bf16r_pair(a, sm[k], q[k], tm[k])
    for k in range(4):
        a(f"v_add_f32 v{q[k]}, s{sEps}, v{q[k]}")
    bf16r_pair(a, q[0], q[1], tm[0]); bf16r_pair(a, q[2], q[3], tm[1])
    for k in range(4):
        a(f"v_sqrt_f32 v{sd[k]}, v{q[k]}")
    for k in range(4):
        a(f"v_rcp_f32 v{rr[k]}, v{sd[k]}")
    for k in range(4):
        a(f"v_fma_f32 v{tm[k]}, -v{sd[k]}, v{sd[k]}, v{q[k]}")
    for k in range(4):
        a(f"v_mul_f32 v{rr[k]}, 0.5, v{rr[k]}")
    for k in range(4):
        a(f"v_fma_f32 v{sd[k]}, v{tm[k]}, v{rr[k]}, v{sd[k]}")
    bf16r_pair(a, sd[0], sd[1], tm[0]); bf16r_pair(a, sd[2], sd[3], tm[1])
    for k in range(4):
        a(f"v_rcp_f32 v{rr[k]}, v{sd[k]}")
    for k in range(4):
        a(f"v_fma_f32 v{tm[k]}, -v{sd[k]}, v{rr[k]}, 1.0")
    for k in range(4):
        a(f"v_fma_f32 v{rr[k]}, v{tm[k]}, v{rr[k]}, v{rr[k]}")
    for k in range(4):
        b = V + 8 * k
        for c in range(0, 8, 2):
            x, y = b + c, b + c + 1
            a(f"v_sub_f32 v{x}, v{x}, v{sm[k]}")
            a(f"v_sub_f32 v{y}, v{y}, v{sm[k]}")
            bf16r_pair(a, x, y, t0)
            a(f"v_mul_f32 v{t0}, v{x}, v{rr[k]}")
            a(f"v_mul_f32 v{t1}, v{y}, v{rr[k]}")
            a(f"v_fma_f32 v{x}, -v{t0}, v{sd[k]}, v{x}")
            a(f"v_fma_f32 v{y}, -v{t1}, v{sd[k]}, v{y}")
            a(f"v_fma_f32 v{x}, v{x}, v{rr[k]}, v{t0}")
            a(f"v_fma_f32 v{y}, v{y}, v{rr[k]}, v{t1}")
            bf16r_pair(a, x, y, t0)

def exp_acc(a, dst, x, t0, t1, sL2E, sL2ELO, sLN2):
    a(f"v_mul_f32 v{t0}, s{sL2E}, v{x}")
    a(f"v_fma_f32 v{t1}, v{x}, s{sL2E}, -v{t0}")
    a(f"v_fma_f32 v{t1}, v{x}, s{sL2ELO}, v{t1}")
    a(f"v_exp_f32 v{dst}, v{t0}")
    a(f"v_mul_f32 v{t1}, s{sLN2}, v{t1}")
    a(f"v_fma_f32 v{dst}, v{dst}, v{t1}, v{dst}")

def kernel_header(a, name):
    a.raw(f".globl {name}")
    a.raw(".p2align 8")
    a.raw(f".type {name},@function")
    a.raw(f"{name}:")
    a.hist = []

def kd(name, vgpr, sgpr=100):
    v = (vgpr + 7) // 8 * 8
    return f""".amdhsa_kernel {name}
  .amdhsa_next_free_vgpr {v}
  .amdhsa_next_free_sgpr {sgpr}
  .amdhsa_accum_offset {v}
  .amdhsa_group_segment_fixed_size 0
  .amdhsa_kernarg_size 120
  .amdhsa_user_sgpr_count 2
  .amdhsa_user_sgpr_kernarg_segment_ptr 1
  .amdhsa_system_sgpr_workgroup_id_x 1
  .amdhsa_float_denorm_mode_32 3
.end_amdhsa_kernel
"""

K1_LDS = 17408
def gen_k1(a):
    kernel_header(a, "k1_kernel")
    a("s_cmp_ge_u32 s2, 640")
    a("s_cbranch_scc1 K1_END")
    a("s_cmp_ge_u32 s2, 512")
    a("s_cbranch_scc1 K1_LN")
    a("""
    s_load_dwordx4 s[4:7], s[0:1], 8
    s_load_dwordx4 s[8:11], s[0:1], 24
    s_load_dwordx2 s[12:13], s[0:1], 40
    s_load_dwordx2 s[14:15], s[0:1], 112
    s_mov_b32 s50, 0x%x
    s_mov_b32 s51, 0x%x
    s_mov_b32 s52, 0x%x
    s_mov_b32 s53, 0x%x
    v_and_b32 v1, 127, v0
    v_lshlrev_b32 v1, 1, v1
    s_lshl_b32 s3, s2, 8
    v_add_u32 v1, s3, v1
    s_lshl_b32 s3, s2, 1
    v_mov_b32 v7, s3
    s_waitcnt lgkmcnt(0)
    """ % (L2E, L2E_LO, LN2, INV2PI))
    srd(a, 16, 4, 5, D * N * 2); srd(a, 20, 6, 7, D * N * 2); srd(a, 24, 8, 9, D * N * 2); srd(a, 28, 10, 11, D * N * 2)
    srd(a, 32, 12, 13, D * 2); srd(a, 36, 14, 15, D * L * 2, WS_R16); srd(a, 40, 14, 15, D * 4, WS_SCL)
    a("""
    buffer_load_ushort v2, v1, s[16:19], 0 offen
    buffer_load_ushort v3, v1, s[20:23], 0 offen
    buffer_load_ushort v4, v1, s[24:27], 0 offen
    buffer_load_ushort v5, v1, s[28:31], 0 offen
    buffer_load_ushort v6, v7, s[32:35], 0 offen
    """)
    a("""
    v_and_b32 v10, 15, v0
    v_bfe_u32 v11, v0, 4, 2
    v_lshrrev_b32 v12, 6, v0
    """)
    a("""
    v_lshrrev_b32 v13, 3, v10
    v_and_b32 v14, 7, v10
    v_lshl_add_u32 v20, v13, 7, v14
    """)
    a("""
    v_lshrrev_b32 v13, 2, v10
    v_and_b32 v14, 3, v10
    v_lshlrev_b32 v13, 7, v13
    v_lshl_add_u32 v13, v14, 1, v13
    v_add_u32 v13, 256, v13
    v_subrev_u32 v14, 8, v10
    v_lshrrev_b32 v15, 1, v14
    v_and_b32 v14, 1, v14
    v_lshlrev_b32 v15, 7, v15
    v_lshl_add_u32 v15, v14, 2, v15
    v_add_u32 v15, 512, v15
    v_cmp_gt_u32 vcc, 8, v10
    v_cndmask_b32 v21, v15, v13, vcc
    """)
    a("""
    v_lshlrev_b32 v13, 7, v10
    v_add_u32 v13, 1024, v13
    v_cmp_gt_u32 vcc, 9, v10
    v_cndmask_b32 v22, 0, v13, vcc
    v_lshlrev_b32 v23, 3, v10
    v_cvt_f32_u32 v20, v20
    v_cvt_f32_u32 v21, v21
    v_cvt_f32_u32 v22, v22
    v_cvt_f32_u32 v23, v23
    s_waitcnt vmcnt(0)
    v_lshlrev_b32 v2, 16, v2
    v_lshlrev_b32 v3, 16, v3
    v_lshlrev_b32 v4, 16, v4
    v_lshlrev_b32 v5, 16, v5
    v_lshlrev_b32 v6, 16, v6
    """)
    exp_acc(a, 8, 6, 13, 14, 50, 51, 52)
    exp_acc(a, 9, 2, 15, 16, 50, 51, 52)
    bf16r_pair(a, 8, 9, 13)
    a("""
    v_mul_f32 v24, -v9, v8
    v_mul_f32 v25, v3, v8
    v_mul_f32 v26, v4, v8
    v_mul_f32 v27, v5, v8
    v_mul_f32 v24, s50, v24
    v_mul_f32 v25, s53, v25
    v_add_f32 v26, v26, v26
    v_add_f32 v27, v27, v27
    v_and_b32 v13, 127, v0
    v_lshlrev_b32 v13, 4, v13
    ds_write_b128 v13, v[24:27]
    s_waitcnt lgkmcnt(0)
    s_barrier
    """)
    a("""
    v_lshlrev_b32 v13, 5, v12
    v_add_u32 v13, v13, v11
    v_lshlrev_b32 v13, 4, v13
    """)
    for qq in range(8):
        a(f"ds_read_b128 v[{64+4*qq}:{67+4*qq}], v13 offset:{64*qq}")
    for r in range(12):
        a(f"v_mov_b32 v{100+r}, 0")
    a("s_waitcnt lgkmcnt(0)")
    def cexp(p, er, fi, o_r, o_i, t):
        a(f"""
        v_mul_f32 v{t}, v{er}, v{p}
        v_mul_f32 v{t+1}, v{fi}, v{p}
        v_exp_f32 v{t}, v{t}
        v_fract_f32 v{t+1}, v{t+1}
        v_cos_f32 v{o_r}, v{t+1}
        v_sin_f32 v{o_i}, v{t+1}
        v_mul_f32 v{o_r}, v{t}, v{o_r}
        v_mul_f32 v{o_i}, v{t}, v{o_i}
        """)
    for qq in range(8):
        er, fi, cr, ci = 64 + 4 * qq, 65 + 4 * qq, 66 + 4 * qq, 67 + 4 * qq
        yb = 30 + 2 * (qq & 1)
        cexp(23, er, fi, yb, yb + 1, 40)
        for tl in range(3):
            e_r, e_i = 42, 43
            xb = 46 + 2 * ((qq * 3 + tl) % 4)
            cexp(20 + tl, er, fi, e_r, e_i, 40)
            a(f"""
            v_mul_f32 v{xb}, v{cr}, v{e_r}
            v_mul_f32 v{xb+1}, -v{cr}, v{e_i}
            v_fma_f32 v{xb}, -v{ci}, v{e_i}, v{xb}
            v_fma_f32 v{xb+1}, -v{ci}, v{e_r}, v{xb+1}
            v_mfma_f32_16x16x4_f32 v[{100+4*tl}:{103+4*tl}], v{xb}, v{yb}, v[{100+4*tl}:{103+4*tl}]
            v_mfma_f32_16x16x4_f32 v[{100+4*tl}:{103+4*tl}], v{xb+1}, v{yb+1}, v[{100+4*tl}:{103+4*tl}]
            """)
    a("""
    v_mul_u32_u24 v13, 3072, v12
    v_lshl_add_u32 v13, v11, 8, v13
    v_lshl_add_u32 v13, v10, 2, v13
    """)
    for tl in range(3):
        for r in range(4):
            a(f"ds_write_b32 v13, v{100+4*tl+r} offset:{2048 + tl*1024 + r*64}")
    a("s_waitcnt lgkmcnt(0)\ns_barrier")
    a("v_lshlrev_b32 v13, 3, v0\nv_sub_u32 v13, 2047, v13")
    for e in range(8):
        ad = 64 + e
        a(f"""
        v_subrev_u32 v14, {e}, v13
        v_cvt_f32_u32 v14, v14
        v_cvt_pk_bf16_f32 v14, v14, v14
        v_lshlrev_b32 v14, 16, v14
        v_cvt_u32_f32 v14, v14
        v_lshrrev_b32 v15, 7, v14
        v_and_b32 v16, 7, v14
        v_bfe_u32 v17, v14, 3, 4
        v_lshl_add_u32 v18, v15, 3, v16
        v_lshrrev_b32 v19, 1, v16
        v_lshl_add_u32 v19, v15, 2, v19
        v_add_u32 v19, 8, v19
        v_cmp_gt_u32 vcc, 2, v15
        v_cndmask_b32 v18, v19, v18, vcc
        v_lshrrev_b32 v19, 2, v16
        v_lshl_add_u32 v19, v15, 1, v19
        v_add_u32 v19, 16, v19
        v_cmp_gt_u32 vcc, 4, v15
        v_cndmask_b32 v18, v19, v18, vcc
        v_add_u32 v19, 24, v15
        v_cmp_gt_u32 vcc, 8, v15
        v_cndmask_b32 v18, v19, v18, vcc
        v_lshl_add_u32 v18, v18, 4, v17
        v_lshlrev_b32 v{ad}, 2, v18
        """)
    for e in range(8):
        for w in range(4):
            a(f"ds_read_b32 v{72+4*e+w}, v{64+e} offset:{2048 + 3072*w}")
    a("s_waitcnt lgkmcnt(0)")
    for e in range(8):
        b = 72 + 4 * e
        a(f"v_add_f32 v{b}, v{b}, v{b+1}\nv_add_f32 v{b+2}, v{b+2}, v{b+3}")
    for e in range(8):
        b = 72 + 4 * e
        a(f"v_add_f32 v{64+e}, v{b}, v{b+2}")
    a("""
    v_max3_f32 v14, abs(v64), abs(v65), abs(v66)
    v_max3_f32 v15, abs(v67), abs(v68), abs(v69)
    v_max3_f32 v14, abs(v70), abs(v71), v14
    v_max_f32 v14, v14, v15
    """)
    allreduce(a, [14], [15], op="v_max_f32")
    a("""
    v_lshlrev_b32 v16, 2, v12
    ds_write_b32 v16, v14 offset:14336
    s_waitcnt lgkmcnt(0)
    s_barrier
    v_mov_b32 v16, 0
    ds_read_b128 v[16:19], v16 offset:14336
    s_waitcnt lgkmcnt(0)
    v_max3_f32 v14, v16, v17, v18
    v_max_f32 v14, v14, v19
    v_frexp_exp_i32_f32 v15, v14
    v_mov_b32 v16, -100
    v_mov_b32 v17, 100
    v_med3_i32 v15, v15, v16, v17
    v_sub_u32 v16, 15, v15
    """)
    for e in range(8):
        a(f"v_ldexp_f32 v{64+e}, v{64+e}, v16")
    for e in range(8):
        a(f"v_cvt_f16_f32 v{64+e}, v{64+e}")
    for e in range(4):
        a(f"v_pack_b32_f16 v{72+e}, v{64+2*e}, v{65+2*e}")
    a("""
    s_lshl_b32 s3, s2, 12
    v_lshlrev_b32 v13, 4, v0
    v_add_u32 v13, s3, v13
    buffer_store_dwordx4 v[72:75], v13, s[36:39], 0 offen
    v_subrev_u32 v15, 15, v15
    v_ldexp_f32 v17, 1.0, v15
    s_lshl_b32 s3, s2, 2
    v_mov_b32 v18, s3
    v_cmp_eq_u32 vcc, 0, v0
    s_and_saveexec_b64 s[44:45], vcc
    buffer_store_dword v17, v18, s[40:43], 0 offen
    s_endpgm
    """)
    a.label("K1_LN")
    a.hist = []
    a("""
    s_load_dwordx2 s[4:5], s[0:1], 0
    s_load_dwordx2 s[14:15], s[0:1], 112
    s_sub_u32 s3, s2, 512
    s_mov_b32 s50, 0x3727c5ac
    s_mov_b32 s51, 0x3b000000
    v_and_b32 v1, 63, v0
    v_lshrrev_b32 v2, 6, v0
    s_lshl_b32 s6, s3, 14
    v_lshlrev_b32 v3, 12, v2
    v_lshl_add_u32 v3, v1, 4, v3
    v_add_u32 v3, s6, v3
    s_waitcnt lgkmcnt(0)
    """)
    srd(a, 16, 4, 5, L * D * 2); srd(a, 20, 14, 15, L * D * 2, WS_UT)
    for k in range(4):
        a(f"buffer_load_dwordx4 v[{16+4*k}:{19+4*k}], v3, s[16:19], 0 offen offset:{1024*k}")
    a("s_waitcnt vmcnt(0)")
    for k in range(4):
        for e in range(4):
            a(f"v_lshlrev_b32 v{32+8*k+2*e}, 16, v{16+4*k+e}")
            a(f"v_and_b32 v{33+8*k+2*e}, 0xffff0000, v{16+4*k+e}")
    layernorm4(a, 32, 64, 50, 51)
    a("v_mul_u32_u24 v4, 264, v1\nv_lshl_add_u32 v4, v2, 3, v4")
    for c in range(8):
        a(f"v_cvt_pk_bf16_f32 v{16+2*c}, v{32+c}, v{40+c}")
        a(f"v_cvt_pk_bf16_f32 v{17+2*c}, v{48+c}, v{56+c}")
    for c in range(8):
        a(f"ds_write_b64 v4, v[{16+2*c}:{17+2*c}] offset:{32*c}")
    a("s_waitcnt lgkmcnt(0)\ns_barrier")
    a("""
    v_lshrrev_b32 v5, 1, v0
    v_lshlrev_b32 v6, 5, v5
    v_lshrrev_b32 v5, 3, v5
    v_lshl_add_u32 v6, v5, 3, v6
    v_and_b32 v5, 1, v0
    v_lshl_add_u32 v6, v5, 4, v6
    v_lshlrev_b32 v7, 4, v0
    v_add_u32 v7, s6, v7
    """)
    for i in range(4):
        a(f"ds_read_b64 v[{16+4*i}:{17+4*i}], v6 offset:{4224*i}")
        a(f"ds_read_b64 v[{18+4*i}:{19+4*i}], v6 offset:{4224*i+8}")
    a("s_waitcnt lgkmcnt(0)")
    for i in range(4):
        if i == 0:
            a(f"buffer_store_dwordx4 v[16:19], v7, s[20:23], 0 offen")
        else:
            a(f"v_add_u32 v7, 4096, v7")
            a(f"buffer_store_dwordx4 v[{16+4*i}:{19+4*i}], v7, s[20:23], 0 offen")
    a.label("K1_END")
    a("s_endpgm")
    return kd("k1_kernel", 112)

def main(out_path):
    import gen2, gen3
    hdr = open("sequential_preLN__ssm_conv_s4d__mixer_channel_mlp__prompt.s.ref").read().split("; Override")[0]
    b = Asm()
    kds = []
    kds.append(gen_k1(b))
    kds.append(gen2.gen_k2(b))
    kds.append(gen2.gen_k3(b))
    k4, lds4 = gen3.gen_k4(b); kds.append(k4)
    k5, lds5 = gen3.gen_k5(b); kds.append(k5)
    launches = [("k1_kernel", 640, 256, K1_LDS), ("k2_kernel", 864, 256, gen2.K2_LDS), ("k3_kernel", 128, 256, gen2.K3_LDS),
                ("k4_kernel", 240, 256, lds4), ("k5_kernel", 256, 256, lds5)]
    a = Asm()
    a.raw(hdr.rstrip())
    for (n, g, bl, l) in launches:
        a.raw(f"; @launch kernel={n} grid=({g},1,1) block=({bl},1,1) lds={l}")
    a.raw('.amdgcn_target "amdgcn-amd-amdhsa--gfx950"')
    a.raw(".text")
    a.raw(b.text())
    a.raw('.section .rodata,"a"')
    for k in kds:
        a.raw(".p2align 6")
        a.raw(k)
    open(out_path, "w").write(a.text())
    print("nops inserted:", b.nops_inserted)

if __name__ == "__main__":
    main(sys.argv[1] if len(sys.argv) > 1 else "sequential_preLN__ssm_conv_s4d__mixer_channel_mlp__prompt.s")
```

```python
import re

TRANS = {"v_exp_f32", "v_log_f32", "v_rcp_f32", "v_rsq_f32", "v_sqrt_f32", "v_sin_f32", "v_cos_f32",
         "v_rcp_iflag_f32"}
REG_RE = re.compile(r"^(-|abs\()?(v|s|a)(\d+)\)?$")
RNG_RE = re.compile(r"^(v|s|a)\[(\d+):(\d+)\]$")

def parse_reg(tok):
    tok = tok.strip()
    t = tok
    if t.startswith("-"): t = t[1:]
    if t.startswith("abs(") and t.endswith(")"): t = t[4:-1]
    if t.startswith("|") and t.endswith("|"): t = t[1:-1]
    m = RNG_RE.match(t)
    if m:
        return {(m.group(1), i) for i in range(int(m.group(2)), int(m.group(3)) + 1)}
    m = re.match(r"^(v|s|a)(\d+)$", t)
    if m:
        return {(m.group(1), int(m.group(2)))}
    if t == "vcc": return {("s", 106), ("s", 107)}
    if t == "exec": return {("s", 126), ("s", 127)}
    if t == "m0": return {("s", 124)}
    return set()

class Rec:
    __slots__ = ("op", "kind", "wv", "rv", "ws", "rs", "passes", "sgemm", "srcc", "srcab", "trans",
                 "dpp", "wide_store", "data", "states", "text", "lanesel")

def classify(text):
    r = Rec()
    r.text = text
    body = text.split(";")[0].strip()
    parts = body.split(None, 1)
    op = parts[0]
    r.op = op
    rest = parts[1] if len(parts) > 1 else ""
    ops = [o.strip() for o in rest.split(",")] if rest else []
    mods = []
    if ops:
        last = ops[-1].split()
        ops[-1] = last[0] if last else ""
        mods = last[1:]
    r.wv, r.rv, r.ws, r.rs = set(), set(), set(), set()
    r.passes = 0; r.sgemm = False; r.srcc = set(); r.srcab = set(); r.trans = False
    r.dpp = any(m.startswith(("row_", "quad_perm", "wave_")) for m in mods) or op.endswith("_dpp")
    r.wide_store = False; r.data = set(); r.states = 1; r.lanesel = set()
    def add(dstv, dsts, regs):
        for x in regs:
            (dstv if x[0] in "va" else dsts).add(x)
    if op == "s_nop":
        r.kind = "nop"; r.states = int(ops[0], 0) + 1
        return r
    if op.startswith("v_mfma"):
        r.kind = "mfma"
        if "16x16x32" in op: r.passes = 4
        elif "32x32x16" in op: r.passes = 8
        elif "16x16x4_f32" in op: r.passes = 8; r.sgemm = True
        elif "32x32x2_f32" in op: r.passes = 16; r.sgemm = True
        else: raise ValueError("unknown mfma " + op)
        add(r.wv, r.ws, parse_reg(ops[0]))
        r.srcab = parse_reg(ops[1]) | parse_reg(ops[2])
        r.srcc = parse_reg(ops[3])
        r.rv = r.srcab | r.srcc
        return r
    if op.startswith("v_"):
        r.kind = "valu"
        base = op.replace("_e32", "").replace("_e64", "").replace("_dpp", "")
        r.trans = base in TRANS
        ndst = 1
        if base in ("v_add_co_u32", "v_sub_co_u32", "v_addc_co_u32", "v_subb_co_u32", "v_div_scale_f32", "v_mad_u64_u32"):
            ndst = 2
        if base.startswith("v_permlane") and "swap" in base:
            for o in ops[:2]:
                add(r.wv, r.ws, parse_reg(o)); add(r.rv, r.rs, parse_reg(o))
            return r
        for o in ops[:ndst]: add(r.wv, r.ws, parse_reg(o))
        for o in ops[ndst:]: add(r.rv, r.rs, parse_reg(o))
        if base in ("v_fmac_f32", "v_pk_fmac_f16", "v_writelane_b32") or "d16" in base:
            add(r.rv, r.rs, parse_reg(ops[0]))
        if base in ("v_readlane_b32", "v_writelane_b32"):
            r.lanesel = {x for x in parse_reg(ops[2]) if x[0] == "s"}
        if base == "v_div_fmas_f32": r.rs |= parse_reg("vcc")
        if r.dpp: add(r.rv, r.rs, parse_reg(ops[0]))
        return r
    if op.startswith("ds_"):
        r.kind = "ds"
        if op.startswith(("ds_read", "ds_bpermute", "ds_permute", "ds_swizzle")):
            add(r.wv, r.ws, parse_reg(ops[0]))
            if "d16" in op: add(r.rv, r.rs, parse_reg(ops[0]))
            for o in ops[1:]: add(r.rv, r.rs, parse_reg(o))
        else:
            for o in ops: add(r.rv, r.rs, parse_reg(o))
        return r
    if op in ("buffer_inv", "buffer_wbl2"):
        r.kind = "vmem"
        return r
    if op.startswith(("buffer_", "global_")):
        r.kind = "vmem"
        if "lds" in mods:
            for o in ops: add(r.rv, r.rs, parse_reg(o))
            r.rs |= parse_reg("m0")
        elif "load" in op:
            add(r.wv, r.ws, parse_reg(ops[0]))
            if "d16" in op: add(r.rv, r.rs, parse_reg(ops[0]))
            for o in ops[1:]: add(r.rv, r.rs, parse_reg(o))
        else:
            for o in ops: add(r.rv, r.rs, parse_reg(o))
            if op.endswith(("x3", "x4")):
                r.wide_store = True; r.data = parse_reg(ops[0])
        return r
    if op.startswith("s_"):
        r.kind = "salu"
        nodst = op.startswith(("s_cmp", "s_cbranch", "s_branch", "s_waitcnt", "s_barrier", "s_endpgm", "s_setprio", "s_sleep"))
        if not nodst and ops:
            add(r.wv, r.ws, parse_reg(ops[0]))
            for o in ops[1:]: add(r.rv, r.rs, parse_reg(o))
        else:
            for o in ops: add(r.rv, r.rs, parse_reg(o))
        return r
    raise ValueError("cannot classify: " + text)

XDL_AB = {2: 5, 4: 8, 8: 12, 16: 20}
XDL_COV = {2: 4, 4: 6, 8: 10, 16: 18}
XDL_V = {2: 5, 4: 8, 8: 12, 16: 20}
SG_AB = {2: 4, 4: 6, 8: 10, 16: 18}
SG_COV = {2: 2, 4: 4, 8: 8, 16: 16}
SG_V = {2: 4, 4: 6, 8: 10, 16: 18}
XDL_WAR = {2: 1, 4: 3, 8: 7, 16: 15}

def required(P, C):
    n = 0
    if P.kind == "valu":
        if C.kind == "mfma" and (P.wv & C.rv): n = max(n, 2)
        if P.trans and C.kind == "valu" and not C.trans and (P.wv & (C.rv | C.wv)): n = max(n, 1)
        if P.ws:
            if C.kind == "valu" and (P.ws & C.rs): n = max(n, 2)
            if C.kind == "valu" and (P.ws & C.lanesel): n = max(n, 4)
            if C.kind == "valu" and C.op.startswith("v_div_fmas") and (P.ws & C.rs): n = max(n, 4)
            if C.kind == "vmem" and (P.ws & C.rs): n = max(n, 5)
            if C.kind == "salu" and (P.ws & C.rs): n = max(n, 1)
        if P.wv & C.rv and C.kind == "valu":
            if C.op.startswith(("v_readlane", "v_readfirstlane")): n = max(n, 1)
            if C.dpp: n = max(n, 2)
            if C.op.startswith("v_permlane"): n = max(n, 2)
    if P.kind == "mfma":
        p = P.passes
        if C.kind == "mfma":
            if P.wv & C.srcab: n = max(n, (SG_AB if P.sgemm else XDL_AB)[p])
            if P.wv & C.srcc:
                if P.wv == C.srcc and P.sgemm == C.sgemm and P.passes == C.passes:
                    n = max(n, 2 if p == 2 else 0)
                else:
                    n = max(n, (SG_COV if P.sgemm else XDL_COV)[p])
            elif P.wv & C.wv:
                n = max(n, (SG_V if P.sgemm else XDL_V)[p])
        elif C.kind in ("valu", "vmem", "ds"):
            if P.wv & (C.rv | C.wv): n = max(n, (SG_V if P.sgemm else XDL_V)[p])
        if C.kind == "valu" and not P.sgemm and (P.srcc & C.wv): n = max(n, XDL_WAR[p])
    if P.kind == "salu" and (("s", 124) in P.ws) and C.kind == "vmem" and (("s", 124) in C.rs):
        n = max(n, 1)
    if P.kind == "vmem" and P.wide_store and (P.data & C.wv):
        n = max(n, 2 if C.kind == "valu" else 1)
    return n

class Asm:
    def __init__(self):
        self.out = []
        self.hist = []
        self.labels = {}
        self.nops_inserted = 0
    def raw(self, s):
        self.out.append(s)
    def _need(self, hist, rec):
        need = 0; dist = 0
        for P in reversed(hist):
            if dist >= 24: break
            q = required(P, rec)
            if q > dist: need = max(need, q - dist)
            dist += P.states
        return need
    def _nop(self, n):
        while n > 0:
            k = min(n, 16)
            t = "s_nop %d" % (k - 1)
            self.out.append("    " + t); self.hist.append(classify(t)); n -= k
            self.nops_inserted += 1
    def __call__(self, text):
        for line in text.strip().split("\n"):
            line = line.strip()
            if not line or line.startswith(";"):
                continue
            rec = classify(line)
            n = self._need(self.hist, rec)
            if n: self._nop(n)
            self.out.append("    " + line)
            self.hist.append(rec)
    def fence(self, n=20):
        self._nop(n)
    def label(self, name, fence=False):
        if fence: self.fence()
        self.out.append(name + ":")
        self.labels[name] = len(self.hist)
    def branch_back(self, op, name):
        start = self.labels[name]
        body = self.hist[start:start + 40]
        br = classify("%s %s" % (op, name))
        extra = 0
        while True:
            h = list(self.hist) + ([classify("s_nop %d" % (extra - 1))] if extra else []) + [br]
            ok = True
            for rec in body:
                if self._need(h, rec) > 0:
                    ok = False; break
                h.append(rec)
            if ok: break
            extra += 1
        if extra: self._nop(extra)
        self.out.append("    %s %s" % (op, name)); self.hist.append(br)
    DIAG = False
    def stamp(self, idx):
        if not Asm.DIAG: return
        self("s_memtime s[98:99]")
        self("s_waitcnt lgkmcnt(0)")
        self("s_mov_b32 s%d, s98" % (70 + idx))
    def rt_start(self):
        if not Asm.DIAG: return
        self("s_mov_b32 s91, s2")
        self("s_memrealtime s[88:89]")
        self("s_memtime s[84:85]")
    def rt_end(self, kslot, ws_lo=14, ws_hi=15):
        if not Asm.DIAG: return
        self("s_memrealtime s[86:87]")
        self("s_memtime s[82:83]")
        self("s_add_u32 s92, s%d, 0x%x" % (ws_lo, 0x3100000 + kslot * 0x10000))
        self("s_addc_u32 s93, s%d, 0" % ws_hi)
        self("s_mov_b32 s94, 0x10000")
        self("s_mov_b32 s95, 0x00020000")
        self("s_mov_b64 exec, -1")
        self("s_waitcnt lgkmcnt(0)")
        self("v_cmp_eq_u32 vcc, 0, v0")
        self("s_and_saveexec_b64 s[96:97], vcc")
        self("s_lshl_b32 s90, s91, 4")
        self("v_mov_b32 v1, s90")
        self("v_mov_b32 v2, s88")
        self("v_mov_b32 v3, s86")
        self("s_sub_u32 s82, s82, s84")
        self("v_mov_b32 v4, s82")
        self("v_mov_b32 v5, 0")
        self("buffer_store_dwordx4 v[2:5], v1, s[92:95], 0 offen")
        self("s_mov_b64 exec, s[96:97]")
    def dump_stamps(self, n, wg, slot, ws_lo=14, ws_hi=15):
        if not Asm.DIAG: return
        lab = "DS_%d_%d" % (slot, len(self.out))
        self("s_cmp_lg_u32 s2, %d" % wg)
        self("s_cbranch_scc1 %s" % lab)
        self("s_add_u32 s92, s%d, 0x%x" % (ws_lo, 0x3000000 + slot * 256))
        self("s_addc_u32 s93, s%d, 0" % ws_hi)
        self("s_mov_b32 s94, 256")
        self("s_mov_b32 s95, 0x00020000")
        self("s_mov_b64 exec, -1")
        self("v_cmp_eq_u32 vcc, 0, v0")
        self("s_and_saveexec_b64 s[96:97], vcc")
        self("v_mov_b32 v1, 0")
        for i in range(n):
            self("v_mov_b32 v2, s%d" % (70 + i))
            self("buffer_store_dword v2, v1, s[92:95], 0 offen offset:%d" % (4 * i))
        self("s_mov_b64 exec, s[96:97]")
        self.out.append(lab + ":")
    def text(self):
        return "\n".join(self.out) + "\n"
```

```python
from asmlib import Asm
from gen import *

U_OFF = 256; U_RS = 160; KC_OFF = 7936; KC_CS = 4288
K2_LDS = KC_OFF + 8 * KC_CS
RED_WS = 8704; RED_RS = 272
def gen_k2(a):
    kernel_header(a, "k2_kernel")
    a.rt_start()
    a("""
    s_cmp_ge_u32 s2, 864
    s_cbranch_scc1 K2_END
    s_cmp_ge_u32 s2, 512
    s_cbranch_scc1 K2_TR
    s_load_dwordx2 s[14:15], s[0:1], 112
    s_load_dwordx2 s[12:13], s[0:1], 48
    s_lshl_b32 s3, s2, 12
    v_lshlrev_b32 v1, 4, v0
    v_add_u32 v1, s3, v1
    v_lshrrev_b32 v2, 1, v0
    v_lshlrev_b32 v2, 14, v2
    v_and_b32 v3, 1, v0
    v_lshl_add_u32 v2, v3, 4, v2
    s_lshl_b32 s3, s2, 5
    v_add_u32 v2, s3, v2
    s_lshl_b32 s3, s2, 2
    v_mov_b32 v3, s3
    s_lshl_b32 s3, s2, 1
    v_mov_b32 v4, s3
    s_waitcnt lgkmcnt(0)
    """)
    a.stamp(0)
    srd(a, 16, 14, 15, D * L * 2, WS_R16); srd(a, 20, 14, 15, D * L * 2, WS_UT); srd(a, 24, 14, 15, D * 4, WS_SCL)
    srd(a, 28, 12, 13, D * 2); srd(a, 32, 14, 15, D * L * 2, WS_T3)
    a("""
    buffer_load_dwordx4 v[16:19], v1, s[16:19], 0 offen
    buffer_load_dwordx4 v[20:23], v1, s[16:19], 0 offen offset:16
    buffer_load_dwordx4 v[24:27], v2, s[20:23], 0 offen
    buffer_load_dword v28, v3, s[24:27], 0 offen
    buffer_load_ushort v29, v4, s[28:31], 0 offen
    v_mov_b32 v40, 0
    v_mov_b32 v41, 0
    v_mov_b32 v42, 0
    v_mov_b32 v43, 0
    v_lshlrev_b32 v5, 4, v0
    v_cmp_gt_u32 vcc, 166, v0
    s_and_saveexec_b64 s[40:41], vcc
    ds_write_b128 v5, v[40:43]
    s_mov_b64 exec, s[40:41]
    v_lshrrev_b32 v6, 3, v0
    v_mul_u32_u24 v6, %d, v6
    v_and_b32 v7, 7, v0
    v_lshl_add_u32 v6, v7, 4, v6
    v_cmp_gt_u32 vcc, 64, v0
    s_and_saveexec_b64 s[40:41], vcc
    ds_write_b128 v6, v[40:43] offset:%d
    s_mov_b64 exec, s[40:41]
    """ % (KC_CS, KC_OFF + 4096))
    a("""
    v_and_b32 v8, 15, v0
    v_bfe_u32 v9, v0, 4, 2
    v_lshrrev_b32 v10, 6, v0
    v_cmp_eq_u32 vcc, 255, v0
    s_waitcnt vmcnt(3)
    v_cndmask_b32 v20, v20, 0, vcc
    v_cndmask_b32 v21, v21, 0, vcc
    v_cndmask_b32 v22, v22, 0, vcc
    v_cndmask_b32 v23, v23, 0, vcc
    """)
    a.stamp(1)
    for k in range(7):
        a(f"v_alignbit_b32 v{32+k}, v{17+k}, v{16+k}, 16")
    for j in range(4):
        a(f"v_mov_b32 v{48+j}, v{17+j}")
        a(f"v_mov_b32 v{52+j}, v{19+j}")
        a(f"v_mov_b32 v{56+j}, v{33+j}")
        a(f"v_mov_b32 v{60+j}, v{35+j}")
    srcs = {0: 16, 1: 32, 2: 48, 3: 56, 4: 18, 5: 34, 6: 52, 7: 60}
    for c in range(8):
        a(f"ds_write_b128 v5, v[{srcs[c]}:{srcs[c]+3}] offset:{KC_OFF + c*KC_CS}")
    a("s_waitcnt vmcnt(2)")
    for j in range(4):
        a(f"""
        v_lshlrev_b32 v44, 16, v{24+j}
        v_and_b32 v45, 0xffff0000, v{24+j}
        v_cvt_pkrtz_f16_f32 v{40+j}, v44, v45
        """)
    a(f"""
    v_lshrrev_b32 v6, 3, v0
    v_mul_u32_u24 v6, {U_RS}, v6
    v_lshl_add_u32 v6, v7, 4, v6
    ds_write_b128 v6, v[40:43] offset:{U_OFF + 15*U_RS}
    v_readfirstlane_b32 s42, v10
    """)
    a("""
    s_mul_i32 s43, s42, 6
    s_cmp_eq_u32 s42, 3
    s_cselect_b32 s44, 2, 0
    s_add_u32 s43, s43, s44
    s_cmp_lt_u32 s42, 2
    s_cselect_b32 s45, 3, 2
    s_cmp_eq_u32 s42, 3
    s_cselect_b32 s45, 0, s45
    s_cmp_lt_u32 s42, 2
    s_cselect_b32 s46, 0, 2
    s_cmp_eq_u32 s42, 3
    s_cselect_b32 s46, 6, s46
    """)
    a(f"""
    v_and_b32 v13, 7, v8
    v_sub_u32 v13, 7, v13
    v_mul_u32_u24 v11, {KC_CS}, v13
    v_lshrrev_b32 v13, 3, v8
    v_sub_u32 v13, v9, v13
    v_lshl_add_u32 v11, v13, 4, v11
    s_lshl_b32 s47, s43, 7
    s_sub_u32 s47, {KC_OFF + 4080 - 96}, s47
    v_add_u32 v11, s47, v11
    v_mul_u32_u24 v12, {U_RS}, v8
    v_lshl_add_u32 v12, v9, 4, v12
    s_mul_i32 s47, s43, {U_RS}
    s_sub_u32 s47, {U_OFF + 15*U_RS}, s47
    v_add_u32 v12, s47, v12
    """)
    for r in range(32):
        a(f"v_mov_b32 v{112+r}, 0")
    a("s_waitcnt lgkmcnt(0)\ns_barrier")
    a.stamp(2)
    SET = [dict(F=48, G=64), dict(F=80, G=96)]
    def Fr(s, al): b = SET[s]["F"] + 4 * al; return f"v[{b}:{b+3}]"
    def Gr(s, c, be): b = SET[s]["G"] + 8 * c + 4 * be; return f"v[{b}:{b+3}]"
    def acc(c, al): b = 112 + 16 * c + 4 * al; return f"v[{b}:{b+3}]"
    def loads(s, cs):
        for al in range(4):
            a(f"ds_read_b128 {Fr(s, al)}, v11 offset:{96 - 32*al}")
        for c in cs:
            for be in range(2):
                a(f"ds_read_b128 {Gr(s, c, be)}, v12 offset:{2560*c + 64*be}")
    def mf(c, al, fa, gb):
        a(f"v_mfma_f32_16x16x32_f16 {acc(c, al)}, {fa}, {gb}, {acc(c, al)}")
    def iteration(s, cs):
        o = 1 - s
        a("s_waitcnt lgkmcnt(0)")
        for c in cs:
            mf(c, 0, Fr(o, 2), Gr(s, c, 1))
            mf(c, 1, Fr(o, 3), Gr(s, c, 1))
        a(f"v_subrev_u32 v11, 128, v11\nv_subrev_u32 v12, {U_RS}, v12")
        loads(o, cs)
        for c in cs:
            for al in range(4):
                mf(c, al, Fr(s, al), Gr(s, c, 0))
        for c in cs:
            mf(c, 2, Fr(s, 0), Gr(s, c, 1))
            mf(c, 3, Fr(s, 1), Gr(s, c, 1))
    a(f"ds_read_b128 {Fr(1, 2)}, v11 offset:160")
    a(f"ds_read_b128 {Fr(1, 3)}, v11 offset:128")
    loads(0, [0, 1])
    a("s_cmp_eq_u32 s45, 0\ns_cbranch_scc1 K2_L1PRE")
    a.label("K2_L2")
    iteration(0, [0, 1]); iteration(1, [0, 1])
    a("s_sub_u32 s45, s45, 1\ns_cmp_lg_u32 s45, 0")
    a.branch_back("s_cbranch_scc1", "K2_L2")
    a.label("K2_L1PRE")
    a("s_cmp_eq_u32 s46, 0\ns_cbranch_scc1 K2_RED")
    a.label("K2_L1")
    iteration(0, [1]); iteration(1, [1])
    a("s_sub_u32 s46, s46, 1\ns_cmp_lg_u32 s46, 0")
    a.branch_back("s_cbranch_scc1", "K2_L1")
    a.label("K2_RED", fence=False)
    a("s_waitcnt lgkmcnt(0)")
    a.fence(12)
    a.stamp(3)
    a(f"""
    s_barrier
    v_mul_u32_u24 v13, {RED_WS}, v10
    v_mul_u32_u24 v14, {RED_RS}, v8
    v_add_u32 v13, v13, v14
    v_lshl_add_u32 v13, v9, 4, v13
    """)
    for c in range(2):
        for al in range(4):
            a(f"ds_write_b128 v13, {acc(c, al)} offset:{16*c*RED_RS + 64*al}")
    a(f"""
    s_waitcnt lgkmcnt(0)
    s_barrier
    v_lshrrev_b32 v13, 3, v0
    v_mul_u32_u24 v13, {RED_RS}, v13
    v_lshl_add_u32 v13, v7, 5, v13
    """)
    for w in range(4):
        a(f"ds_read_b128 v[{48+8*w}:{51+8*w}], v13 offset:{RED_WS*w}")
        a(f"ds_read_b128 v[{52+8*w}:{55+8*w}], v13 offset:{RED_WS*w+16}")
    a("v_lshlrev_b32 v29, 16, v29\ns_waitcnt lgkmcnt(0)")
    a.stamp(4)
    for e in range(8):
        a(f"v_add_f32 v{48+e}, v{48+e}, v{56+e}\nv_add_f32 v{64+e}, v{64+e}, v{72+e}")
    for e in range(8):
        a(f"v_add_f32 v{48+e}, v{48+e}, v{64+e}")
    for e in range(8):
        a(f"v_mul_f32 v{48+e}, v{48+e}, v28")
    for j in range(4):
        x, y = 48 + 2 * j, 49 + 2 * j
        bf16r_pair(a, x, y, 44)
        a(f"""
        v_lshlrev_b32 v45, 16, v{24+j}
        v_and_b32 v46, 0xffff0000, v{24+j}
        v_mul_f32 v45, v45, v29
        v_mul_f32 v46, v46, v29
        """)
        bf16r_pair(a, 45, 46, 44)
        a(f"""
        v_add_f32 v{x}, v{x}, v45
        v_add_f32 v{y}, v{y}, v46
        v_cvt_pk_bf16_f32 v{56+j}, v{x}, v{y}
        """)
    a("buffer_store_dwordx4 v[56:59], v2, s[32:35], 0 offen")
    a.stamp(5)
    a.dump_stamps(6, 100, 2)
    a.rt_end(1)
    a("s_endpgm")
    gen_k2_tr(a)
    return kd("k2_kernel", 144)

K3_LDS = 17408
def gen_k3(a):
    kernel_header(a, "k3_kernel")
    a.rt_start()
    a("""
    s_cmp_ge_u32 s2, 128
    s_cbranch_scc1 K3_END
    s_load_dwordx2 s[4:5], s[0:1], 0
    s_load_dwordx2 s[14:15], s[0:1], 112
    s_mov_b32 s50, 0x3727c5ac
    s_mov_b32 s51, 0x3b000000
    v_and_b32 v1, 63, v0
    v_lshrrev_b32 v2, 6, v0
    s_lshl_b32 s6, s2, 14
    v_lshlrev_b32 v3, 12, v2
    v_lshl_add_u32 v3, v1, 4, v3
    v_add_u32 v3, s6, v3
    v_lshlrev_b32 v7, 4, v0
    v_add_u32 v7, s6, v7
    s_waitcnt lgkmcnt(0)
    """)
    a.stamp(0)
    srd(a, 16, 4, 5, L * D * 2); srd(a, 20, 14, 15, L * D * 2, WS_T3)
    srd(a, 24, 14, 15, L * D * 2, WS_H); srd(a, 28, 14, 15, L * D * 2, WS_Z)
    for i in range(4):
        if i: a("v_add_u32 v7, 4096, v7")
        a(f"buffer_load_dwordx4 v[{96+4*i}:{99+4*i}], v7, s[20:23], 0 offen")
    for k in range(4):
        a(f"buffer_load_dwordx4 v[{16+4*k}:{19+4*k}], v3, s[16:19], 0 offen offset:{1024*k}")
    a("""
    v_lshrrev_b32 v5, 1, v0
    v_lshlrev_b32 v6, 5, v5
    v_lshrrev_b32 v5, 3, v5
    v_lshl_add_u32 v6, v5, 3, v6
    v_and_b32 v5, 1, v0
    v_lshl_add_u32 v6, v5, 4, v6
    v_mul_u32_u24 v4, 264, v1
    v_lshl_add_u32 v4, v2, 3, v4
    s_waitcnt vmcnt(4)
    """)
    for i in range(4):
        a(f"ds_write_b64 v6, v[{96+4*i}:{97+4*i}] offset:{4224*i}")
        a(f"ds_write_b64 v6, v[{98+4*i}:{99+4*i}] offset:{4224*i+8}")
    a("s_waitcnt lgkmcnt(0)\ns_barrier")
    for c in range(8):
        a(f"ds_read_b64 v[{96+2*c}:{97+2*c}], v4 offset:{32*c}")
    a("s_waitcnt vmcnt(0) lgkmcnt(0)")
    a.stamp(1)
    for k in range(4):
        for e in range(4):
            a(f"v_lshlrev_b32 v{32+8*k+2*e}, 16, v{16+4*k+e}")
            a(f"v_and_b32 v{33+8*k+2*e}, 0xffff0000, v{16+4*k+e}")
    for c in range(8):
        a(f"""
        v_lshlrev_b32 v64, 16, v{96+2*c}
        v_and_b32 v65, 0xffff0000, v{96+2*c}
        v_lshlrev_b32 v66, 16, v{97+2*c}
        v_and_b32 v67, 0xffff0000, v{97+2*c}
        v_add_f32 v{32+c}, v{32+c}, v64
        v_add_f32 v{40+c}, v{40+c}, v65
        v_add_f32 v{48+c}, v{48+c}, v66
        v_add_f32 v{56+c}, v{56+c}, v67
        """)
    for k in range(4):
        for e in range(4):
            x, y, t = 32 + 8 * k + 2 * e, 33 + 8 * k + 2 * e, 16 + 4 * k + e
            a(f"v_cvt_pk_bf16_f32 v{t}, v{x}, v{y}")
            a(f"v_lshlrev_b32 v{x}, 16, v{t}")
            a(f"v_and_b32 v{y}, 0xffff0000, v{t}")
    for k in range(4):
        a(f"buffer_store_dwordx4 v[{16+4*k}:{19+4*k}], v3, s[24:27], 0 offen offset:{1024*k}")
    a.stamp(2)
    layernorm4(a, 32, 64, 50, 51)
    a.stamp(3)
    layernorm4(a, 32, 64, 50, 51)
    a.stamp(4)
    for k in range(4):
        for e in range(4):
            a(f"v_cvt_pk_bf16_f32 v{96+4*k+e}, v{32+8*k+2*e}, v{33+8*k+2*e}")
    for k in range(4):
        a(f"buffer_store_dwordx4 v[{96+4*k}:{99+4*k}], v3, s[28:31], 0 offen offset:{1024*k}")
    a.stamp(5)
    a.dump_stamps(6, 100, 3)
    a.rt_end(2)
    a.label("K3_END")
    a("s_endpgm")
    return kd("k3_kernel", 112)


def gen_k2_tr(a):
    a.label("K2_TR")
    a.hist = []
    a("""
    s_load_dwordx2 s[4:5], s[0:1], 64
    s_load_dwordx2 s[6:7], s[0:1], 80
    s_load_dwordx2 s[14:15], s[0:1], 112
    s_sub_u32 s3, s2, 640
    s_waitcnt lgkmcnt(0)
    s_cmp_ge_u32 s3, 176
    s_cbranch_scc1 K2_TR2
    """)
    srd(a, 16, 4, 5, D * F * 2); srd(a, 20, 14, 15, F * D * 2, WS_W1T)
    a("""
    s_and_b32 s40, s3, 7
    s_lshr_b32 s41, s3, 3
    s_mov_b32 s42, %d
    s_mov_b32 s43, %d
    s_branch K2_TRC
    """ % (F * 2, D * 2))
    a.label("K2_TR2")
    srd(a, 16, 6, 7, F * D * 2); srd(a, 20, 14, 15, D * FP * 2, WS_W2T)
    a("""
    s_sub_u32 s3, s3, 176
    s_and_b32 s41, s3, 7
    s_lshr_b32 s40, s3, 3
    s_mov_b32 s42, %d
    s_mov_b32 s43, %d
    """ % (D * 2, FP * 2))
    a.label("K2_TRC")
    a("""
    v_lshrrev_b32 v1, 3, v0
    v_and_b32 v2, 7, v0
    s_lshl_b32 s44, s40, 6
    v_add_u32 v3, s44, v1
    v_mul_lo_u32 v3, v3, s42
    s_lshl_b32 s45, s41, 7
    v_lshl_add_u32 v3, v2, 4, v3
    v_add_u32 v3, s45, v3
    s_lshl_b32 s46, s42, 5
    v_add_u32 v4, s46, v3
    buffer_load_dwordx4 v[8:11], v3, s[16:19], 0 offen
    buffer_load_dwordx4 v[12:15], v4, s[16:19], 0 offen
    v_mul_u32_u24 v5, 144, v1
    v_lshl_add_u32 v5, v2, 4, v5
    v_lshrrev_b32 v6, 2, v0
    v_and_b32 v7, 3, v0
    v_mul_u32_u24 v16, 2304, v7
    v_lshl_add_u32 v16, v6, 1, v16
    s_lshl_b32 s45, s41, 6
    v_add_u32 v17, s45, v6
    v_mul_lo_u32 v17, v17, s43
    s_lshl_b32 s44, s40, 7
    v_lshl_add_u32 v17, v7, 5, v17
    v_add_u32 v17, s44, v17
    s_waitcnt vmcnt(0)
    ds_write_b128 v5, v[8:11]
    ds_write_b128 v5, v[12:15] offset:4608
    s_waitcnt lgkmcnt(0)
    s_barrier
    """)
    for e in range(16):
        a(f"ds_read_u16 v{32 + e}, v16 offset:{144*e}")
    a("s_waitcnt lgkmcnt(0)")
    for e in range(8):
        a(f"v_lshl_or_b32 v{20+e}, v{33+2*e}, 16, v{32+2*e}")
    a("""
    buffer_store_dwordx4 v[20:23], v17, s[20:23], 0 offen
    buffer_store_dwordx4 v[24:27], v17, s[20:23], 0 offen offset:16
    """)
    a.rt_end(0)
    a.label("K2_END")
    a("s_endpgm")
```

```python
from asmlib import Asm
from gen import *

WS_END = WS_HH + L * F * 2
def gen_gemm(a, name, *, RT, CT, BK, NST, NBUF, n_rt, n_ct, r_ws, r_ld, c_ws, c_ld, epi_pre, epilogue, last_c_limit=None):
    SL = BK // 8; ROWB = BK * 2
    RBUF = RT * ROWB; CBUF = CT * ROWB; STG = RBUF + CBUF
    lds = NBUF * STG
    npc = STG // 1024; nR = RBUF // 1024
    NP = (npc + 7) // 8
    rpp = 1024 // ROWB
    fr = RT // 32; fc = CT // 64
    KS = BK // 32
    ACC = 24; nacc = fr * fc * 4
    FRG = ACC + nacc; nfr = (fr + fc) * 4
    ADDR = FRG + KS * nfr
    EPI = ADDR + 40
    vtop = max(EPI + 16, 96)
    xm = min(SL, 16) - 1
    kernel_header(a, name)
    a.rt_start()
    nwg = n_rt * n_ct
    a(f"""
    s_cmp_ge_u32 s2, {nwg}
    s_cbranch_scc1 {name}_END
    s_load_dwordx2 s[14:15], s[0:1], 112
    s_load_dwordx4 s[4:7], s[0:1], 72
    s_load_dwordx4 s[8:11], s[0:1], 88
    s_and_b32 s40, s2, {n_ct - 1}
    s_lshr_b32 s41, s2, {n_ct.bit_length() - 1}
    v_and_b32 v1, 63, v0
    v_lshrrev_b32 v2, 6, v0
    v_and_b32 v5, 15, v0
    v_bfe_u32 v6, v0, 4, 2
    v_lshrrev_b32 v7, 8, v0
    v_bfe_u32 v8, v0, 6, 2
    v_readfirstlane_b32 s60, v2
    s_waitcnt lgkmcnt(0)
    """)
    a.stamp(0)
    srd(a, 16, 14, 15, WS_END)
    a("s_lshl_b32 s60, s60, 10")
    a(f"""
    v_lshrrev_b32 v3, {SL.bit_length() - 1}, v1
    v_and_b32 v4, {SL - 1}, v1
    s_mul_i32 s42, s41, {RT}
    s_mul_i32 s43, s40, {CT}
    s_mov_b32 s46, {r_ld}
    s_mov_b32 s47, {c_ld}
    s_mov_b32 s48, 0x{r_ws:x}
    s_mov_b32 s49, 0x{c_ws:x}
    """)
    vA = [ADDR + i for i in range(NP)]
    vAL = [ADDR + NP + i for i in range(NP)]
    for i in range(NP):
        a(f"""
        v_add_u32 v9, {8*i}, v2
        v_subrev_u32 v10, {npc}, v9
        v_cmp_gt_u32 vcc, {npc}, v9
        v_cndmask_b32 v9, v10, v9, vcc
        v_mul_u32_u24 v10, {rpp}, v9
        v_add_u32 v10, v10, v3
        v_and_b32 v11, {xm}, v10
        v_xor_b32 v11, v11, v4
        v_add_u32 v12, s42, v10
        v_mul_lo_u32 v12, v12, s46
        v_add_u32 v12, s48, v12
        v_subrev_u32 v13, {RT}, v10
        v_add_u32 v13, s43, v13
        v_mul_lo_u32 v13, v13, s47
        v_add_u32 v13, s49, v13
        v_cmp_gt_u32 s[50:51], {nR}, v9
        v_cndmask_b32 v12, v13, v12, s[50:51]
        v_lshl_add_u32 v{vA[i]}, v11, 4, v12
        """)
        if last_c_limit is not None:
            a(f"""
            v_cmp_le_u32 vcc, {last_c_limit}, v11
            s_andn2_b64 vcc, vcc, s[50:51]
            v_mov_b32 v13, 0x40000000
            v_cndmask_b32 v13, 0, v13, vcc
            v_add_u32 v{vAL[i]}, v{vA[i]}, v13
            """)
    for i in range(NP):
        a(f"""
        s_add_u32 s{64+i}, s60, {8192*i}
        s_cmp_ge_u32 s{64+i}, {STG}
        s_cselect_b32 s52, {STG}, 0
        s_sub_u32 s{64+i}, s{64+i}, s52
        """)
    def dma1(s, i):
        base = (s % NBUF) * STG
        va = vAL[i] if (last_c_limit is not None and s == NST - 1) else vA[i]
        a(f"s_add_u32 m0, s{64+i}, {base}")
        a(f"s_mov_b32 s44, {s * ROWB}")
        a(f"buffer_load_dwordx4 v{va}, s[16:19], s44 offen lds")
    for s in range(min(NBUF - 1, NST)):
        for i in range(NP): dma1(s, i)
    vF = [ADDR + 2 * NP + ks for ks in range(KS)]
    vG = [ADDR + 2 * NP + KS + ks for ks in range(KS)]
    assert 2 * NP + 6 * KS <= 40
    for ks in range(KS):
        a(f"""
        v_and_b32 v9, {xm}, v5
        v_xor_b32 v9, v9, v6
        v_xor_b32 v9, {4*ks}, v9
        v_lshlrev_b32 v9, 4, v9
        v_mul_u32_u24 v10, {RT//2}, v7
        v_add_u32 v10, v10, v5
        v_mul_u32_u24 v10, {ROWB}, v10
        v_add_u32 v{vF[ks]}, v9, v10
        v_mul_u32_u24 v10, {CT//4}, v8
        v_add_u32 v10, v10, v5
        v_mul_u32_u24 v10, {ROWB}, v10
        v_add_u32 v10, v9, v10
        v_add_u32 v{vG[ks]}, {RBUF}, v10
        v_add_u32 v{vF[ks] + 2*KS}, 0x10000, v{vF[ks]}
        v_add_u32 v{vG[ks] + 2*KS}, 0x10000, v{vG[ks]}
        v_add_u32 v{vF[ks] + 4*KS}, 0x20000, v{vF[ks]}
        v_add_u32 v{vG[ks] + 4*KS}, 0x20000, v{vG[ks]}
        """)
    for r in range(nacc):
        a(f"v_mov_b32 v{ACC + r}, 0")
    def frg(ks, j): b = FRG + ks * nfr + 4 * j; return f"v[{b}:{b+3}]"
    def fread(s, ks):
        base = (s % NBUF) * STG
        for t in range(fr):
            off = base + 16 * t * ROWB
            a(f"ds_read_b128 {frg(ks, t)}, v{vF[ks] + 2*KS*(off >> 16)} offset:{off & 0xffff}")
        for t in range(fc):
            off = base + 16 * t * ROWB
            a(f"ds_read_b128 {frg(ks, fr + t)}, v{vG[ks] + 2*KS*(off >> 16)} offset:{off & 0xffff}")
    def accr(i, j): b = ACC + 4 * (i * fc + j); return f"v[{b}:{b+3}]"
    nf = fr + fc
    P = dict(ACC=ACC, fr=fr, fc=fc, RT=RT, CT=CT, FRG=FRG, ADDR=ADDR, EPI=EPI)
    n_e = epi_pre(a, P)
    for s in range(NST):
        dg = (s == 4)
        inflight_after = min(NST - 1, s + NBUF - 2) - s
        a(f"s_waitcnt vmcnt({NP * inflight_after + (n_e if s <= NBUF - 2 else 0)})")
        a("s_barrier")
        if s == 0: a.stamp(1)
        if dg: a.stamp(4)
        for ks in range(KS): fread(s, ks)
        M = KS * fr * fc
        sn = s + NBUF - 1
        npairs = NP if sn < NST else 0
        done = 0; mcount = 0
        for ks in range(KS):
            a(f"s_waitcnt lgkmcnt({min(15, nf * (KS - 1 - ks))})")
            if dg: a.stamp(5 + ks)
            for i in range(fr):
                for j in range(fc):
                    a(f"v_mfma_f32_16x16x32_bf16 {accr(i, j)}, {frg(ks, i)}, {frg(ks, fr + j)}, {accr(i, j)}")
                    mcount += 1
                    while done < npairs and done * M < mcount * npairs:
                        dma1(sn, done); done += 1
        assert done == npairs
        if dg: a.stamp(13)
    a.stamp(2)
    epilogue(a, P)
    a.stamp(3)
    a.dump_stamps(14, 100, 4 if name.startswith("k4") else 5)
    a.rt_end(3 if name.startswith("k4") else 4)
    a.label(f"{name}_END")
    a("s_endpgm")
    return kd(name, vtop), lds

def pre_k4(a, P):
    RT, CT, E = P["RT"], P["CT"], P["EPI"]
    srd(a, 24, 4, 5, F * 2)
    srd(a, 28, 14, 15, L * F * 2, WS_HH)
    a(f"""
    s_mul_i32 s42, s41, {RT}
    v_mul_u32_u24 v9, {RT//2}, v7
    v_lshl_add_u32 v9, v6, 2, v9
    v_add_u32 v9, s42, v9
    s_mul_i32 s42, s40, {CT}
    v_mul_u32_u24 v10, {CT//4}, v8
    v_add_u32 v10, v10, v5
    v_add_u32 v10, s42, v10
    s_mov_b32 s43, {F*2}
    v_mul_lo_u32 v10, v10, s43
    v_lshlrev_b32 v11, 1, v9
    v_add_u32 v10, v10, v11
    s_mov_b32 s45, 0x3d372713
    s_mov_b32 s46, 0xc0135761
    """)
    for i in range(P["fr"]):
        a(f"buffer_load_dwordx2 v[{E+2*i}:{E+2*i+1}], v11, s[24:27], 0 offen offset:{32*i}")
    return P["fr"]

def epi_k4(a, P):
    ACC, fr, fc, RT, CT, E = P["ACC"], P["fr"], P["fc"], P["RT"], P["CT"], P["EPI"]
    B = P["FRG"]
    for i in range(fr):
        a(f"""
        v_lshlrev_b32 v{B+4*i}, 16, v{E+2*i}
        v_and_b32 v{B+4*i+1}, 0xffff0000, v{E+2*i}
        v_lshlrev_b32 v{B+4*i+2}, 16, v{E+2*i+1}
        v_and_b32 v{B+4*i+3}, 0xffff0000, v{E+2*i+1}
        """)
    W0 = B + 4 * fr
    chains = []
    for i in range(fr):
        for j in range(fc):
            b = ACC + 4 * (i * fc + j)
            for h in range(2):
                x, y = b + 2 * h, b + 2 * h + 1
                W = W0 + 2 * (2 * (i * fc + j) + h)
                ch = bf16r_pair_l(x, y, W)
                ch += [f"v_add_f32 v{x}, v{x}, v{B+4*i+2*h}", f"v_add_f32 v{y}, v{y}, v{B+4*i+2*h+1}"]
                ch += bf16r_pair_l(x, y, W)
                ch += f"""
                v_mul_f32 v{W}, v{x}, v{x}
                v_mul_f32 v{W+1}, v{y}, v{y}
                v_mul_f32 v{W}, s45, v{W}
                v_mul_f32 v{W+1}, s45, v{W+1}
                v_fma_f32 v{W}, v{W}, v{x}, v{x}
                v_fma_f32 v{W+1}, v{W+1}, v{y}, v{y}
                v_mul_f32 v{W}, s46, v{W}
                v_mul_f32 v{W+1}, s46, v{W+1}
                v_exp_f32 v{W}, v{W}
                v_exp_f32 v{W+1}, v{W+1}
                v_add_f32 v{W}, 1.0, v{W}
                v_add_f32 v{W+1}, 1.0, v{W+1}
                v_rcp_f32 v{W}, v{W}
                v_rcp_f32 v{W+1}, v{W+1}
                v_mul_f32 v{x}, v{x}, v{W}
                v_mul_f32 v{y}, v{y}, v{W+1}
                v_cvt_pk_bf16_f32 v{b+h}, v{x}, v{y}
                """.split("\n")
                chains.append(ch)
    chains2 = []
    for ci, ch in enumerate(chains):
        chains2.append(ch)
    interleave(a, [c[:-2] for c in chains2])
    O0 = W0
    for i in range(fr):
        for j in range(fc):
            b = ACC + 4 * (i * fc + j)
            O = O0 + 2 * (i * fc + j) * 2
            a(f"v_cvt_pk_bf16_f32 v{O}, v{b}, v{b+1}")
            a(f"v_cvt_pk_bf16_f32 v{O+1}, v{b+2}, v{b+3}")
    for i in range(fr):
        a(f"""
        v_add_u32 v12, {16*i}, v9
        v_cmp_gt_u32 vcc, {F}, v12
        s_and_saveexec_b64 s[48:49], vcc
        """)
        for j in range(fc):
            O = O0 + 2 * (i * fc + j) * 2
            off = 16 * j * F * 2 + 32 * i
            so = off & ~0xfff
            if so:
                a(f"s_mov_b32 s44, {so}")
                a(f"buffer_store_dwordx2 v[{O}:{O+1}], v10, s[28:31], s44 offen offset:{off - so}")
            else:
                a(f"buffer_store_dwordx2 v[{O}:{O+1}], v10, s[28:31], 0 offen offset:{off}")
        a("s_mov_b64 exec, s[48:49]")

def pre_k5(a, P):
    RT, CT, E, fr, fc = P["RT"], P["CT"], P["EPI"], P["fr"], P["fc"]
    srd(a, 24, 8, 9, D * 2)
    srd(a, 28, 14, 15, L * D * 2, WS_H)
    srd(a, 32, 10, 11, L * D * 2)
    a(f"""
    s_mul_i32 s42, s41, {RT}
    v_mul_u32_u24 v9, {RT//2}, v7
    v_lshl_add_u32 v9, v6, 2, v9
    v_add_u32 v9, s42, v9
    s_mul_i32 s42, s40, {CT}
    v_mul_u32_u24 v10, {CT//4}, v8
    v_add_u32 v10, v10, v5
    v_add_u32 v10, s42, v10
    v_lshlrev_b32 v10, 10, v10
    v_lshlrev_b32 v11, 1, v9
    v_add_u32 v10, v10, v11
    """)
    for i in range(fr):
        a(f"buffer_load_dwordx2 v[{E+2*i}:{E+2*i+1}], v11, s[24:27], 0 offen offset:{32*i}")
    Hh = E + 4
    for i in range(fr):
        for j in range(fc):
            q = Hh + 2 * (i * fc + j)
            a(f"buffer_load_dwordx2 v[{q}:{q+1}], v10, s[28:31], 0 offen offset:{32*i}")
            assert fc == 1
    return fr + fr * fc

def epi_k5(a, P):
    ACC, fr, fc, RT, CT, E = P["ACC"], P["fr"], P["fc"], P["RT"], P["CT"], P["EPI"]
    T = E; Hh = E + 4
    W0 = P["FRG"]
    chains = []
    for i in range(fr):
        for j in range(fc):
            b = ACC + 4 * (i * fc + j); q = Hh + 2 * (i * fc + j)
            for h in range(2):
                x, y = b + 2 * h, b + 2 * h + 1
                W = W0 + 4 * (i * fc + j) + 2 * h
                ch = bf16r_pair_l(x, y, W)
                ch += [f"v_lshlrev_b32 v{W}, 16, v{T+2*i+h}", f"v_and_b32 v{W+1}, 0xffff0000, v{T+2*i+h}",
                       f"v_add_f32 v{x}, v{x}, v{W}", f"v_add_f32 v{y}, v{y}, v{W+1}"]
                ch += bf16r_pair_l(x, y, W)
                ch += [f"v_lshlrev_b32 v{W}, 16, v{q+h}", f"v_and_b32 v{W+1}, 0xffff0000, v{q+h}",
                       f"v_add_f32 v{x}, v{x}, v{W}", f"v_add_f32 v{y}, v{y}, v{W+1}",
                       f"v_cvt_pk_bf16_f32 v{q+h}, v{x}, v{y}"]
                chains.append(ch)
    interleave(a, chains)
    for i in range(fr):
        q = Hh + 2 * i
        a(f"buffer_store_dwordx2 v[{q}:{q+1}], v10, s[32:35], 0 offen offset:{32*i}")

def gen_k4(a):
    return gen_gemm(a, "k4_kernel", RT=96, CT=128, BK=64, NST=8, NBUF=5, n_rt=15, n_ct=16,
                    r_ws=WS_W1T, r_ld=D * 2, c_ws=WS_Z, c_ld=D * 2, epi_pre=pre_k4, epilogue=epi_k4)
def gen_k5(a):
    return gen_gemm(a, "k5_kernel", RT=64, CT=64, BK=128, NST=11, NBUF=4, n_rt=8, n_ct=32,
                    r_ws=WS_W2T, r_ld=FP * 2, c_ws=WS_HH, c_ld=F * 2,
                    epi_pre=pre_k5, epilogue=epi_k5, last_c_limit=12)
```

```python
from asmlib import Asm
from gen import *

def layernormN(a, NT, V, S, sEps, sInvD):
    R = range(NT)
    sm = [S + i for i in R]; tm = [S + NT + i for i in R]; q = [S + 2 * NT + i for i in R]
    rr = [S + 3 * NT + i for i in R]; sd = [S + 4 * NT + i for i in R]; T = S + 5 * NT
    for k in R:
        b = V + 8 * k
        a(f"v_add_f32 v{sm[k]}, v{b}, v{b+1}\nv_add_f32 v{tm[k]}, v{b+2}, v{b+3}\nv_add_f32 v{q[k]}, v{b+4}, v{b+5}\nv_add_f32 v{rr[k]}, v{b+6}, v{b+7}")
    for k in R:
        a(f"v_add_f32 v{sm[k]}, v{sm[k]}, v{tm[k]}\nv_add_f32 v{q[k]}, v{q[k]}, v{rr[k]}")
    for k in R:
        a(f"v_add_f32 v{sm[k]}, v{sm[k]}, v{q[k]}")
    allreduce(a, sm, tm)
    for k in R:
        a(f"v_mul_f32 v{sm[k]}, s{sInvD}, v{sm[k]}")
    chains = []
    for k in R:
        b = V + 8 * k
        for half in range(2):
            t = tm[k] if half == 0 else rr[k]; acc = q[k] if half == 0 else sd[k]
            ch = []
            for c in range(4):
                ch.append(f"v_sub_f32 v{t}, v{b+4*half+c}, v{sm[k]}")
                ch.append(f"v_mul_f32 v{acc}, v{t}, v{t}" if c == 0 else f"v_fmac_f32 v{acc}, v{t}, v{t}")
            chains.append(ch)
    interleave(a, chains)
    for k in R:
        a(f"v_add_f32 v{q[k]}, v{q[k]}, v{sd[k]}")
    allreduce(a, q, tm)
    for k in R:
        a(f"v_mul_f32 v{q[k]}, s{sInvD}, v{q[k]}")
    interleave(a, [bf16r_pair_l(sm[k], q[k], tm[k]) for k in R])
    for k in R:
        a(f"v_add_f32 v{q[k]}, s{sEps}, v{q[k]}")
    interleave(a, [bf16r_pair_l(q[k], q[k + 1], tm[k]) for k in range(0, NT, 2)])
    for k in R: a(f"v_sqrt_f32 v{sd[k]}, v{q[k]}")
    for k in R: a(f"v_rcp_f32 v{rr[k]}, v{sd[k]}")
    for k in R: a(f"v_fma_f32 v{tm[k]}, -v{sd[k]}, v{sd[k]}, v{q[k]}")
    for k in R: a(f"v_mul_f32 v{rr[k]}, 0.5, v{rr[k]}")
    for k in R: a(f"v_fma_f32 v{sd[k]}, v{tm[k]}, v{rr[k]}, v{sd[k]}")
    interleave(a, [bf16r_pair_l(sd[k], sd[k + 1], tm[k]) for k in range(0, NT, 2)])
    for k in R: a(f"v_rcp_f32 v{rr[k]}, v{sd[k]}")
    for k in R: a(f"v_fma_f32 v{tm[k]}, -v{sd[k]}, v{rr[k]}, 1.0")
    for k in R: a(f"v_fma_f32 v{rr[k]}, v{tm[k]}, v{rr[k]}, v{rr[k]}")
    chains = []
    for k in R:
        b = V + 8 * k
        for half in range(2):
            t0, t1 = T + 4 * k + 2 * half, T + 4 * k + 2 * half + 1
            ch = []
            for c in range(4 * half, 4 * half + 4, 2):
                x, y = b + c, b + c + 1
                ch += [f"v_sub_f32 v{x}, v{x}, v{sm[k]}", f"v_sub_f32 v{y}, v{y}, v{sm[k]}"]
                ch += bf16r_pair_l(x, y, t0)
                ch += [f"v_mul_f32 v{t0}, v{x}, v{rr[k]}", f"v_mul_f32 v{t1}, v{y}, v{rr[k]}",
                       f"v_fma_f32 v{x}, -v{t0}, v{sd[k]}, v{x}", f"v_fma_f32 v{y}, -v{t1}, v{sd[k]}, v{y}",
                       f"v_fma_f32 v{x}, v{x}, v{rr[k]}, v{t0}", f"v_fma_f32 v{y}, v{y}, v{rr[k]}, v{t1}"]
                ch += bf16r_pair_l(x, y, t0)
            chains.append(ch)
    interleave(a, chains)

K1_LDS = 18432
def gen_k1(a):
    kernel_header(a, "k1_kernel")
    a.rt_start()
    a("""
    s_cmp_ge_u32 s2, 304
    s_cbranch_scc1 K1_END
    s_cmp_ge_u32 s2, 128
    s_cbranch_scc1 K1_TR
    s_load_dwordx2 s[4:5], s[0:1], 0
    s_load_dwordx2 s[14:15], s[0:1], 112
    s_mov_b32 s50, 0x3727c5ac
    s_mov_b32 s51, 0x3b000000
    v_and_b32 v1, 63, v0
    v_lshrrev_b32 v2, 6, v0
    s_lshl_b32 s6, s2, 14
    v_lshlrev_b32 v3, 11, v2
    v_lshl_add_u32 v3, v1, 4, v3
    v_add_u32 v3, s6, v3
    s_waitcnt lgkmcnt(0)
    """)
    srd(a, 16, 4, 5, L * D * 2)
    for k in range(2):
        a(f"buffer_load_dwordx4 v[{16+4*k}:{19+4*k}], v3, s[16:19], 0 offen offset:{1024*k}")
    srd(a, 20, 14, 15, L * D * 2, WS_UT)
    a("""
    v_mul_u32_u24 v4, 264, v1
    v_lshl_add_u32 v4, v2, 2, v4
    v_lshrrev_b32 v5, 1, v0
    v_lshlrev_b32 v6, 5, v5
    v_lshrrev_b32 v5, 3, v5
    v_lshl_add_u32 v6, v5, 3, v6
    v_and_b32 v5, 1, v0
    v_lshl_add_u32 v6, v5, 4, v6
    v_lshlrev_b32 v7, 4, v0
    v_add_u32 v7, s6, v7
    v_add_u32 v8, 8192, v7
    s_waitcnt vmcnt(0)
    """)
    for k in range(2):
        for e in range(4):
            a(f"v_lshlrev_b32 v{32+8*k+2*e}, 16, v{16+4*k+e}")
            a(f"v_and_b32 v{33+8*k+2*e}, 0xffff0000, v{16+4*k+e}")
    layernormN(a, 2, 32, 48, 50, 51)
    for c in range(8):
        a(f"v_cvt_pk_bf16_f32 v{16+c}, v{32+c}, v{40+c}")
    for c in range(8):
        a(f"ds_write_b32 v4, v{16+c} offset:{32*c}")
    a("s_waitcnt lgkmcnt(0)\ns_barrier")
    for i in range(2):
        a(f"ds_read_b64 v[{16+4*i}:{17+4*i}], v6 offset:{8448*i}")
        a(f"ds_read_b64 v[{18+4*i}:{19+4*i}], v6 offset:{8448*i+8}")
    a("""
    s_waitcnt lgkmcnt(0)
    buffer_store_dwordx4 v[16:19], v7, s[20:23], 0 offen
    buffer_store_dwordx4 v[20:23], v8, s[20:23], 0 offen
    """)
    a.rt_end(0)
    a("s_endpgm")
    gen_tr(a)
    a.label("K1_END")
    a("s_endpgm")
    return kd("k1_kernel", 72)

K3_LDS = 17408
def gen_k3(a):
    kernel_header(a, "k3_kernel")
    a.rt_start()
    a("""
    s_cmp_ge_u32 s2, 128
    s_cbranch_scc1 K3_END
    s_load_dwordx2 s[4:5], s[0:1], 0
    s_load_dwordx2 s[14:15], s[0:1], 112
    s_mov_b32 s50, 0x3727c5ac
    s_mov_b32 s51, 0x3b000000
    v_and_b32 v1, 63, v0
    v_lshrrev_b32 v2, 6, v0
    s_lshl_b32 s6, s2, 14
    v_lshlrev_b32 v3, 11, v2
    v_lshl_add_u32 v3, v1, 4, v3
    v_add_u32 v3, s6, v3
    v_lshlrev_b32 v7, 4, v0
    v_add_u32 v7, s6, v7
    v_add_u32 v8, 8192, v7
    s_waitcnt lgkmcnt(0)
    """)
    srd(a, 20, 14, 15, L * D * 2, WS_T3)
    a("""
    buffer_load_dwordx4 v[72:75], v7, s[20:23], 0 offen
    buffer_load_dwordx4 v[76:79], v8, s[20:23], 0 offen
    """)
    srd(a, 16, 4, 5, L * D * 2)
    for k in range(2):
        a(f"buffer_load_dwordx4 v[{16+4*k}:{19+4*k}], v3, s[16:19], 0 offen offset:{1024*k}")
    srd(a, 24, 14, 15, L * D * 2, WS_H); srd(a, 28, 14, 15, L * D * 2, WS_Z)
    a("""
    v_lshrrev_b32 v5, 1, v0
    v_lshlrev_b32 v6, 5, v5
    v_lshrrev_b32 v5, 3, v5
    v_lshl_add_u32 v6, v5, 3, v6
    v_and_b32 v5, 1, v0
    v_lshl_add_u32 v6, v5, 4, v6
    v_mul_u32_u24 v4, 264, v1
    v_lshl_add_u32 v4, v2, 2, v4
    s_waitcnt vmcnt(2)
    """)
    for i in range(2):
        a(f"ds_write_b64 v6, v[{72+4*i}:{73+4*i}] offset:{8448*i}")
        a(f"ds_write_b64 v6, v[{74+4*i}:{75+4*i}] offset:{8448*i+8}")
    a("s_waitcnt lgkmcnt(0)\ns_barrier")
    for c in range(8):
        a(f"ds_read_b32 v{72+c}, v4 offset:{32*c}")
    a("s_waitcnt vmcnt(0) lgkmcnt(0)")
    for k in range(2):
        for e in range(4):
            a(f"v_lshlrev_b32 v{32+8*k+2*e}, 16, v{16+4*k+e}")
            a(f"v_and_b32 v{33+8*k+2*e}, 0xffff0000, v{16+4*k+e}")
    for c in range(8):
        a(f"v_lshlrev_b32 v{48+c}, 16, v{72+c}\nv_and_b32 v{56+c}, 0xffff0000, v{72+c}")
    for c in range(8):
        a(f"v_add_f32 v{32+c}, v{32+c}, v{48+c}\nv_add_f32 v{40+c}, v{40+c}, v{56+c}")
    for k in range(2):
        for e in range(4):
            a(f"v_cvt_pk_bf16_f32 v{16+4*k+e}, v{32+8*k+2*e}, v{33+8*k+2*e}")
    for k in range(2):
        for e in range(4):
            a(f"v_lshlrev_b32 v{32+8*k+2*e}, 16, v{16+4*k+e}")
            a(f"v_and_b32 v{33+8*k+2*e}, 0xffff0000, v{16+4*k+e}")
    for k in range(2):
        a(f"buffer_store_dwordx4 v[{16+4*k}:{19+4*k}], v3, s[24:27], 0 offen offset:{1024*k}")
    layernormN(a, 2, 32, 48, 50, 51)
    layernormN(a, 2, 32, 48, 50, 51)
    for k in range(2):
        for e in range(4):
            a(f"v_cvt_pk_bf16_f32 v{72+4*k+e}, v{32+8*k+2*e}, v{33+8*k+2*e}")
    for k in range(2):
        a(f"buffer_store_dwordx4 v[{72+4*k}:{75+4*k}], v3, s[28:31], 0 offen offset:{1024*k}")
    a.rt_end(2)
    a.label("K3_END")
    a("s_endpgm")
    return kd("k3_kernel", 80)

U_OFF = 256; U_RS = 160; KC_OFF = 7936; KC_CS = 4288
K2_LDS = 55296
RED_WS = 8704; RED_RS = 272
PARAM = KC_OFF; PART = KC_OFF + 2048; MAXS = 0
def gen_k2(a):
    import gen2
    kernel_header(a, "k2_kernel")
    a.rt_start()
    a("""
    s_cmp_ge_u32 s2, 512
    s_cbranch_scc1 K2_END
    s_load_dwordx4 s[4:7], s[0:1], 8
    s_load_dwordx4 s[8:11], s[0:1], 24
    s_load_dwordx4 s[36:39], s[0:1], 40
    s_load_dwordx2 s[14:15], s[0:1], 112
    s_mov_b32 s50, 0x%x
    s_mov_b32 s51, 0x%x
    s_mov_b32 s52, 0x%x
    s_mov_b32 s53, 0x%x
    v_and_b32 v1, 127, v0
    v_lshlrev_b32 v1, 1, v1
    s_lshl_b32 s3, s2, 8
    v_add_u32 v1, s3, v1
    s_lshl_b32 s3, s2, 1
    v_mov_b32 v7, s3
    v_lshrrev_b32 v150, 1, v0
    v_lshlrev_b32 v150, 14, v150
    v_and_b32 v3, 1, v0
    v_lshl_add_u32 v150, v3, 4, v150
    s_lshl_b32 s3, s2, 5
    v_add_u32 v150, s3, v150
    s_waitcnt lgkmcnt(0)
    """ % (L2E, L2E_LO, LN2, INV2PI))
    a.stamp(0)
    srd(a, 32, 36, 37, D * 2)
    a("buffer_load_ushort v6, v7, s[32:35], 0 offen")
    srd(a, 16, 4, 5, D * N * 2)
    a("buffer_load_ushort v2, v1, s[16:19], 0 offen")
    srd(a, 20, 6, 7, D * N * 2)
    a("buffer_load_ushort v3, v1, s[20:23], 0 offen")
    srd(a, 24, 8, 9, D * N * 2)
    a("buffer_load_ushort v4, v1, s[24:27], 0 offen")
    srd(a, 28, 10, 11, D * N * 2)
    a("buffer_load_ushort v5, v1, s[28:31], 0 offen")
    srd(a, 40, 14, 15, D * L * 2, WS_UT)
    a("buffer_load_dwordx4 v[144:147], v150, s[40:43], 0 offen")
    srd(a, 32, 38, 39, D * 2)
    a("buffer_load_ushort v149, v7, s[32:35], 0 offen")
    srd(a, 44, 14, 15, D * L * 2, WS_T3)
    a("""
    v_mov_b32 v40, 0
    v_mov_b32 v41, 0
    v_mov_b32 v42, 0
    v_mov_b32 v43, 0
    v_lshlrev_b32 v151, 4, v0
    v_cmp_gt_u32 vcc, 166, v0
    s_and_saveexec_b64 s[48:49], vcc
    ds_write_b128 v151, v[40:43]
    s_mov_b64 exec, s[48:49]
    v_and_b32 v10, 15, v0
    v_bfe_u32 v11, v0, 4, 2
    v_lshrrev_b32 v12, 6, v0
    v_lshrrev_b32 v13, 3, v10
    v_and_b32 v14, 7, v10
    v_lshl_add_u32 v20, v13, 7, v14
    v_lshrrev_b32 v13, 2, v10
    v_and_b32 v14, 3, v10
    v_lshlrev_b32 v13, 7, v13
    v_lshl_add_u32 v13, v14, 1, v13
    v_add_u32 v13, 256, v13
    v_subrev_u32 v14, 8, v10
    v_lshrrev_b32 v15, 1, v14
    v_and_b32 v14, 1, v14
    v_lshlrev_b32 v15, 7, v15
    v_lshl_add_u32 v15, v14, 2, v15
    v_add_u32 v15, 512, v15
    v_cmp_gt_u32 vcc, 8, v10
    v_cndmask_b32 v21, v15, v13, vcc
    v_lshlrev_b32 v13, 7, v10
    v_add_u32 v13, 1024, v13
    v_cmp_gt_u32 vcc, 9, v10
    v_cndmask_b32 v22, 0, v13, vcc
    v_lshlrev_b32 v23, 3, v10
    v_cvt_f32_u32 v20, v20
    v_cvt_f32_u32 v21, v21
    v_cvt_f32_u32 v22, v22
    v_cvt_f32_u32 v23, v23
    v_lshlrev_b32 v13, 3, v0
    v_sub_u32 v13, 2047, v13
    """)
    chains = []
    for e in range(8):
        t = 64 + 6 * e; m = 54 + 2 * e
        chains.append(f"""
        v_subrev_u32 v{t}, {e}, v13
        v_cvt_f32_u32 v{t}, v{t}
        v_cvt_pk_bf16_f32 v{t}, v{t}, v{t}
        v_lshlrev_b32 v{t}, 16, v{t}
        v_cvt_u32_f32 v{t}, v{t}
        v_lshrrev_b32 v{t+1}, 7, v{t}
        v_and_b32 v{t+2}, 7, v{t}
        v_bfe_u32 v{t+3}, v{t}, 3, 4
        v_lshl_add_u32 v{t+4}, v{t+1}, 3, v{t+2}
        v_lshrrev_b32 v{t+5}, 1, v{t+2}
        v_lshl_add_u32 v{t+5}, v{t+1}, 2, v{t+5}
        v_add_u32 v{t+5}, 8, v{t+5}
        v_cmp_gt_u32 s[{m}:{m+1}], 2, v{t+1}
        v_cndmask_b32 v{t+4}, v{t+5}, v{t+4}, s[{m}:{m+1}]
        v_lshrrev_b32 v{t+5}, 2, v{t+2}
        v_lshl_add_u32 v{t+5}, v{t+1}, 1, v{t+5}
        v_add_u32 v{t+5}, 16, v{t+5}
        v_cmp_gt_u32 s[{m}:{m+1}], 4, v{t+1}
        v_cndmask_b32 v{t+4}, v{t+5}, v{t+4}, s[{m}:{m+1}]
        v_add_u32 v{t+5}, 24, v{t+1}
        v_cmp_gt_u32 s[{m}:{m+1}], 8, v{t+1}
        v_cndmask_b32 v{t+4}, v{t+5}, v{t+4}, s[{m}:{m+1}]
        v_lshl_add_u32 v{t+4}, v{t+4}, 4, v{t+3}
        v_lshlrev_b32 v{112+e}, 2, v{t+4}
        """.split("\n"))
    interleave(a, chains)
    a("""
    s_waitcnt vmcnt(2)
    v_lshlrev_b32 v2, 16, v2
    v_lshlrev_b32 v3, 16, v3
    v_lshlrev_b32 v4, 16, v4
    v_lshlrev_b32 v5, 16, v5
    v_lshlrev_b32 v6, 16, v6
    """)
    a.stamp(1)
    exp_acc(a, 8, 6, 13, 14, 50, 51, 52)
    exp_acc(a, 9, 2, 15, 16, 50, 51, 52)
    bf16r_pair(a, 8, 9, 13)
    a(f"""
    v_mul_f32 v24, -v9, v8
    v_mul_f32 v25, v3, v8
    v_mul_f32 v26, v4, v8
    v_mul_f32 v27, v5, v8
    v_mul_f32 v24, s50, v24
    v_mul_f32 v25, s53, v25
    v_add_f32 v26, v26, v26
    v_add_f32 v27, v27, v27
    v_and_b32 v13, 127, v0
    v_lshlrev_b32 v13, 4, v13
    ds_write_b128 v13, v[24:27] offset:{PARAM}
    s_waitcnt lgkmcnt(0)
    s_barrier
    v_lshlrev_b32 v13, 5, v12
    v_add_u32 v13, v13, v11
    v_lshlrev_b32 v13, 4, v13
    """)
    for qq in range(8):
        a(f"ds_read_b128 v[{64+4*qq}:{67+4*qq}], v13 offset:{PARAM + 64*qq}")
    for r in range(12):
        a(f"v_mov_b32 v{100+r}, 0")
    a("s_waitcnt lgkmcnt(0)")
    def cexp_l(p, er, fi, o_r, o_i, t):
        return [f"v_mul_f32 v{t}, v{er}, v{p}", f"v_mul_f32 v{t+1}, v{fi}, v{p}", f"v_exp_f32 v{t}, v{t}",
                f"v_fract_f32 v{t+1}, v{t+1}", f"v_cos_f32 v{o_r}, v{t+1}", f"v_sin_f32 v{o_i}, v{t+1}",
                f"v_mul_f32 v{o_r}, v{t}, v{o_r}", f"v_mul_f32 v{o_i}, v{t}, v{o_i}"]
    for qq in range(8):
        er, fi, cr, ci = 64 + 4 * qq, 65 + 4 * qq, 66 + 4 * qq, 67 + 4 * qq
        par = qq & 1
        yb = 28 + 2 * par
        chains = [cexp_l(23, er, fi, yb, yb + 1, 32)]
        xbs = []
        for tl in range(3):
            t = 34 + 4 * tl; e_r, e_i = t + 2, t + 3
            xb = 46 + 6 * par + 2 * tl
            xbs.append(xb)
            chains.append(cexp_l(20 + tl, er, fi, e_r, e_i, t) + [
                f"v_mul_f32 v{xb}, v{cr}, v{e_r}", f"v_mul_f32 v{xb+1}, -v{cr}, v{e_i}",
                f"v_fma_f32 v{xb}, -v{ci}, v{e_i}, v{xb}", f"v_fma_f32 v{xb+1}, -v{ci}, v{e_r}, v{xb+1}"])
        interleave(a, chains)
        for h in range(2):
            for tl in range(3):
                a(f"v_mfma_f32_16x16x4_f32 v[{100+4*tl}:{103+4*tl}], v{xbs[tl]+h}, v{yb+h}, v[{100+4*tl}:{103+4*tl}]")
        if qq == 3:
            a("s_waitcnt vmcnt(0)")
            for j in range(4):
                a(f"""
                v_lshlrev_b32 v58, 16, v{144+j}
                v_and_b32 v59, 0xffff0000, v{144+j}
                v_cvt_pkrtz_f16_f32 v{60+j}, v58, v59
                """)
            a(f"""
            v_lshrrev_b32 v58, 3, v0
            v_mul_u32_u24 v58, {U_RS}, v58
            v_and_b32 v7, 7, v0
            v_lshl_add_u32 v58, v7, 4, v58
            ds_write_b128 v58, v[60:63] offset:{U_OFF + 15*U_RS}
            """)
    a.stamp(2)
    a("""
    v_mul_u32_u24 v13, 3072, v12
    v_lshl_add_u32 v13, v11, 8, v13
    v_lshl_add_u32 v13, v10, 2, v13
    """)
    for tl in range(3):
        for r in range(4):
            a(f"ds_write_b32 v13, v{100+4*tl+r} offset:{PART + tl*1024 + r*64}")
    a("s_waitcnt lgkmcnt(0)\ns_barrier")
    for e in range(8):
        for w in range(4):
            a(f"ds_read_b32 v{72+4*e+w}, v{112+e} offset:{PART + 3072*w}")
    a("s_waitcnt lgkmcnt(0)")
    for e in range(8):
        b = 72 + 4 * e
        a(f"v_add_f32 v{b}, v{b}, v{b+1}\nv_add_f32 v{b+2}, v{b+2}, v{b+3}")
    for e in range(8):
        b = 72 + 4 * e
        a(f"v_add_f32 v{64+e}, v{b}, v{b+2}")
    a("""
    v_max3_f32 v14, abs(v64), abs(v65), abs(v66)
    v_max3_f32 v15, abs(v67), abs(v68), abs(v69)
    v_max3_f32 v14, abs(v70), abs(v71), v14
    v_max_f32 v14, v14, v15
    """)
    allreduce(a, [14], [15], op="v_max_f32")
    a(f"""
    v_lshlrev_b32 v16, 2, v12
    ds_write_b32 v16, v14 offset:{MAXS}
    s_waitcnt lgkmcnt(0)
    s_barrier
    v_mov_b32 v16, 0
    ds_read_b128 v[16:19], v16 offset:{MAXS}
    s_waitcnt lgkmcnt(0)
    v_max3_f32 v14, v16, v17, v18
    v_max_f32 v14, v14, v19
    v_frexp_exp_i32_f32 v15, v14
    v_mov_b32 v16, -100
    v_mov_b32 v17, 100
    v_med3_i32 v15, v15, v16, v17
    v_sub_u32 v16, 15, v15
    """)
    for e in range(8): a(f"v_ldexp_f32 v{64+e}, v{64+e}, v16")
    for e in range(8): a(f"v_cvt_f16_f32 v{64+e}, v{64+e}")
    for e in range(4): a(f"v_pack_b32_f16 v{16+e}, v{64+2*e}, v{65+2*e}")
    a(f"""
    v_subrev_u32 v15, 15, v15
    v_ldexp_f32 v148, 1.0, v15
    ds_write_b128 v151, v[16:19] offset:{KC_OFF}
    v_mov_b32 v40, 0
    v_mov_b32 v41, 0
    v_mov_b32 v42, 0
    v_mov_b32 v43, 0
    v_lshrrev_b32 v6, 3, v0
    v_mul_u32_u24 v6, {KC_CS}, v6
    v_lshl_add_u32 v6, v7, 4, v6
    v_cmp_gt_u32 vcc, 64, v0
    s_and_saveexec_b64 s[48:49], vcc
    ds_write_b128 v6, v[40:43] offset:{KC_OFF + 4096}
    s_mov_b64 exec, s[48:49]
    s_waitcnt lgkmcnt(0)
    s_barrier
    ds_read_b128 v[20:23], v151 offset:{KC_OFF + 16}
    v_mov_b32 v8, v10
    v_mov_b32 v9, v11
    v_mov_b32 v10, v12
    v_readfirstlane_b32 s42, v12
    s_waitcnt lgkmcnt(0)
    """)
    a.stamp(3)
    for k in range(7):
        a(f"v_alignbit_b32 v{32+k}, v{17+k}, v{16+k}, 16")
    for j in range(4):
        a(f"v_mov_b32 v{48+j}, v{17+j}\nv_mov_b32 v{52+j}, v{19+j}\nv_mov_b32 v{56+j}, v{33+j}\nv_mov_b32 v{60+j}, v{35+j}")
    srcs = {1: 32, 2: 48, 3: 56, 4: 18, 5: 34, 6: 52, 7: 60}
    for c in range(1, 8):
        a(f"ds_write_b128 v151, v[{srcs[c]}:{srcs[c]+3}] offset:{KC_OFF + c*KC_CS}")
    a("""
    s_mul_i32 s43, s42, 6
    s_cmp_eq_u32 s42, 3
    s_cselect_b32 s56, 2, 0
    s_add_u32 s43, s43, s56
    s_cmp_lt_u32 s42, 2
    s_cselect_b32 s54, 3, 2
    s_cmp_eq_u32 s42, 3
    s_cselect_b32 s54, 0, s54
    s_cmp_lt_u32 s42, 2
    s_cselect_b32 s55, 0, 2
    s_cmp_eq_u32 s42, 3
    s_cselect_b32 s55, 6, s55
    """)
    a(f"""
    v_and_b32 v13, 7, v8
    v_sub_u32 v13, 7, v13
    v_mul_u32_u24 v11, {KC_CS}, v13
    v_lshrrev_b32 v13, 3, v8
    v_sub_u32 v13, v9, v13
    v_lshl_add_u32 v11, v13, 4, v11
    s_lshl_b32 s57, s43, 7
    s_sub_u32 s57, {KC_OFF + 4080 - 96}, s57
    v_add_u32 v11, s57, v11
    v_mul_u32_u24 v12, {U_RS}, v8
    v_lshl_add_u32 v12, v9, 4, v12
    s_mul_i32 s57, s43, {U_RS}
    s_sub_u32 s57, {U_OFF + 15*U_RS}, s57
    v_add_u32 v12, s57, v12
    """)
    for r in range(32):
        a(f"v_mov_b32 v{112+r}, 0")
    a("s_waitcnt lgkmcnt(0)\ns_barrier")
    a.stamp(4)
    SET = [dict(F=48, G=64), dict(F=80, G=96)]
    def Fr(s, al): b = SET[s]["F"] + 4 * al; return f"v[{b}:{b+3}]"
    def Gr(s, c, be): b = SET[s]["G"] + 8 * c + 4 * be; return f"v[{b}:{b+3}]"
    def acc(c, al): b = 112 + 16 * c + 4 * al; return f"v[{b}:{b+3}]"
    def loads(s, cs):
        for al in range(4):
            a(f"ds_read_b128 {Fr(s, al)}, v11 offset:{96 - 32*al}")
        for c in cs:
            for be in range(2):
                a(f"ds_read_b128 {Gr(s, c, be)}, v12 offset:{2560*c + 64*be}")
    def mf(c, al, fa, gb):
        a(f"v_mfma_f32_16x16x32_f16 {acc(c, al)}, {fa}, {gb}, {acc(c, al)}")
    def iteration(s, cs):
        o = 1 - s
        a("s_waitcnt lgkmcnt(0)")
        for c in cs:
            mf(c, 0, Fr(o, 2), Gr(s, c, 1))
            mf(c, 1, Fr(o, 3), Gr(s, c, 1))
        a(f"v_subrev_u32 v11, 128, v11\nv_subrev_u32 v12, {U_RS}, v12")
        loads(o, cs)
        for c in cs:
            for al in range(4):
                mf(c, al, Fr(s, al), Gr(s, c, 0))
        for c in cs:
            mf(c, 2, Fr(s, 0), Gr(s, c, 1))
            mf(c, 3, Fr(s, 1), Gr(s, c, 1))
    a(f"ds_read_b128 {Fr(1, 2)}, v11 offset:160")
    a(f"ds_read_b128 {Fr(1, 3)}, v11 offset:128")
    loads(0, [0, 1])
    a("s_cmp_eq_u32 s54, 0\ns_cbranch_scc1 K2_L1PRE")
    a.label("K2_L2")
    iteration(0, [0, 1]); iteration(1, [0, 1])
    a("s_sub_u32 s54, s54, 1\ns_cmp_lg_u32 s54, 0")
    a.branch_back("s_cbranch_scc1", "K2_L2")
    a.label("K2_L1PRE")
    a("s_cmp_eq_u32 s55, 0\ns_cbranch_scc1 K2_RED")
    a.label("K2_L1")
    iteration(0, [1]); iteration(1, [1])
    a("s_sub_u32 s55, s55, 1\ns_cmp_lg_u32 s55, 0")
    a.branch_back("s_cbranch_scc1", "K2_L1")
    a.label("K2_RED", fence=False)
    a("s_waitcnt lgkmcnt(0)")
    a.fence(12)
    a.stamp(5)
    a(f"""
    s_barrier
    v_mul_u32_u24 v13, {RED_WS}, v10
    v_mul_u32_u24 v14, {RED_RS}, v8
    v_add_u32 v13, v13, v14
    v_lshl_add_u32 v13, v9, 4, v13
    """)
    for c in range(2):
        for al in range(4):
            a(f"ds_write_b128 v13, {acc(c, al)} offset:{16*c*RED_RS + 64*al}")
    a(f"""
    s_waitcnt lgkmcnt(0)
    s_barrier
    v_lshrrev_b32 v13, 3, v0
    v_mul_u32_u24 v13, {RED_RS}, v13
    v_lshl_add_u32 v13, v7, 5, v13
    """)
    for w in range(4):
        a(f"ds_read_b128 v[{48+8*w}:{51+8*w}], v13 offset:{RED_WS*w}")
        a(f"ds_read_b128 v[{52+8*w}:{55+8*w}], v13 offset:{RED_WS*w+16}")
    a("v_lshlrev_b32 v149, 16, v149\ns_waitcnt lgkmcnt(0)")
    for e in range(8):
        a(f"v_add_f32 v{48+e}, v{48+e}, v{56+e}\nv_add_f32 v{64+e}, v{64+e}, v{72+e}")
    for e in range(8):
        a(f"v_add_f32 v{48+e}, v{48+e}, v{64+e}")
    for e in range(8):
        a(f"v_mul_f32 v{48+e}, v{48+e}, v148")
    chains = []
    for j in range(4):
        x, y = 48 + 2 * j, 49 + 2 * j
        t = 64 + 4 * j
        ch = bf16r_pair_l(x, y, t)
        ch += [f"v_lshlrev_b32 v{t+1}, 16, v{144+j}", f"v_and_b32 v{t+2}, 0xffff0000, v{144+j}",
               f"v_mul_f32 v{t+1}, v{t+1}, v149", f"v_mul_f32 v{t+2}, v{t+2}, v149"]
        ch += bf16r_pair_l(t + 1, t + 2, t)
        ch += [f"v_add_f32 v{x}, v{x}, v{t+1}", f"v_add_f32 v{y}, v{y}, v{t+2}", f"v_cvt_pk_bf16_f32 v{56+j}, v{x}, v{y}"]
        chains.append(ch)
    interleave(a, chains)
    a("buffer_store_dwordx4 v[56:59], v150, s[44:47], 0 offen")
    a.stamp(6)
    a.dump_stamps(7, 100, 2)
    a.rt_end(1)
    a.label("K2_END")
    a("s_endpgm")
    return kd("k2_kernel", 152)


def gen_tr(a):
    a.label("K1_TR")
    a.hist = []
    a("""
    s_load_dwordx2 s[4:5], s[0:1], 64
    s_load_dwordx2 s[6:7], s[0:1], 80
    s_load_dwordx2 s[14:15], s[0:1], 112
    s_sub_u32 s3, s2, 128
    v_lshrrev_b32 v30, 8, v0
    v_and_b32 v0, 255, v0
    s_waitcnt lgkmcnt(0)
    s_cmp_ge_u32 s3, 88
    s_cbranch_scc1 K1_TR2
    """)
    srd(a, 16, 4, 5, D * F * 2); srd(a, 20, 14, 15, F * D * 2, WS_W1T)
    a("""
    s_lshl_b32 s3, s3, 1
    v_add_u32 v31, s3, v30
    v_and_b32 v32, 7, v31
    v_lshrrev_b32 v33, 3, v31
    s_mov_b32 s42, %d
    s_mov_b32 s43, %d
    s_branch K1_TRC
    """ % (F * 2, D * 2))
    a.label("K1_TR2")
    srd(a, 16, 6, 7, F * D * 2); srd(a, 20, 14, 15, D * FP * 2, WS_W2T)
    a("""
    s_sub_u32 s3, s3, 88
    s_lshl_b32 s3, s3, 1
    v_add_u32 v31, s3, v30
    v_and_b32 v33, 7, v31
    v_lshrrev_b32 v32, 3, v31
    s_mov_b32 s42, %d
    s_mov_b32 s43, %d
    """ % (D * 2, FP * 2))
    a.label("K1_TRC")
    a("""
    v_lshrrev_b32 v1, 3, v0
    v_and_b32 v2, 7, v0
    v_lshl_add_u32 v3, v32, 6, v1
    v_mul_lo_u32 v3, v3, s42
    v_lshl_add_u32 v3, v2, 4, v3
    v_lshl_add_u32 v3, v33, 7, v3
    s_lshl_b32 s46, s42, 5
    v_add_u32 v4, s46, v3
    buffer_load_dwordx4 v[8:11], v3, s[16:19], 0 offen
    buffer_load_dwordx4 v[12:15], v4, s[16:19], 0 offen
    v_mul_u32_u24 v34, 9216, v30
    v_mul_u32_u24 v5, 144, v1
    v_lshl_add_u32 v5, v2, 4, v5
    v_add_u32 v5, v5, v34
    v_lshrrev_b32 v6, 2, v0
    v_and_b32 v7, 3, v0
    v_mul_u32_u24 v16, 2304, v7
    v_lshl_add_u32 v16, v6, 1, v16
    v_add_u32 v16, v16, v34
    v_lshl_add_u32 v17, v33, 6, v6
    v_mul_lo_u32 v17, v17, s43
    v_lshl_add_u32 v17, v7, 5, v17
    v_lshl_add_u32 v17, v32, 7, v17
    s_waitcnt vmcnt(0)
    ds_write_b128 v5, v[8:11]
    ds_write_b128 v5, v[12:15] offset:4608
    s_waitcnt lgkmcnt(0)
    s_barrier
    """)
    for e in range(16):
        a(f"ds_read_u16 v{36 + e}, v16 offset:{144*e}")
    a("s_waitcnt lgkmcnt(0)")
    for e in range(8):
        a(f"v_lshl_or_b32 v{20+e}, v{37+2*e}, 16, v{36+2*e}")
    a("""
    buffer_store_dwordx4 v[20:23], v17, s[20:23], 0 offen
    buffer_store_dwordx4 v[24:27], v17, s[20:23], 0 offen offset:16
    """)
    a.rt_end(0)
```

```python
import sys
sys.path.insert(0, "gen")
from asmlib import Asm

L = 2048; D = 512; N = 128; F = 1376; FP = 1408
WS_UT = 0x000000; WS_R16 = 0x200000; WS_SCL = 0x400000; WS_T3 = 0x500000; WS_H = 0x700000
WS_Z = 0x900000; WS_W1T = 0xB00000; WS_W2T = 0xD00000; WS_HH = 0xF00000
L2E = 0x3fb8aa3b; L2E_LO = 0x32a57060; LN2 = 0x3f317218; INV2PI = 0x3e22f983

def srd(a, sd, lo, hi, nbytes, off=0):
    if off:
        a(f"s_add_u32 s{sd}, s{lo}, 0x{off:x}")
        a(f"s_addc_u32 s{sd+1}, s{hi}, 0")
    else:
        a(f"s_mov_b32 s{sd}, s{lo}")
        a(f"s_mov_b32 s{sd+1}, s{hi}")
    a(f"s_mov_b32 s{sd+2}, 0x{nbytes:x}")
    a(f"s_mov_b32 s{sd+3}, 0x00020000")

def allreduce(a, regs, tmps, op="v_add_f32"):
    for n in (8, 4, 2, 1):
        for r in regs:
            a(f"{op}_dpp v{r}, v{r}, v{r} row_ror:{n} row_mask:0xf bank_mask:0xf")
    for sw in ("v_permlane16_swap_b32", "v_permlane32_swap_b32"):
        for r, t in zip(regs, tmps):
            a(f"v_mov_b32 v{t}, v{r}")
        for r, t in zip(regs, tmps):
            a(f"{sw} v{r}, v{t}")
        for r, t in zip(regs, tmps):
            a(f"{op} v{r}, v{r}, v{t}")

def bf16r_pair(a, x, y, t):
    a(f"v_cvt_pk_bf16_f32 v{t}, v{x}, v{y}")
    a(f"v_lshlrev_b32 v{x}, 16, v{t}")
    a(f"v_and_b32 v{y}, 0xffff0000, v{t}")

def interleave(a, chains):
    chains = [[l.strip() for l in c if l.strip()] for c in chains]
    n = max(len(c) for c in chains)
    for i in range(n):
        for c in chains:
            if i < len(c): a(c[i])

def bf16r_pair_l(x, y, t):
    return [f"v_cvt_pk_bf16_f32 v{t}, v{x}, v{y}", f"v_lshlrev_b32 v{x}, 16, v{t}", f"v_and_b32 v{y}, 0xffff0000, v{t}"]

def layernorm4(a, V, S, sEps, sInvD):
    sm = [S + i for i in range(4)]; tm = [S + 4 + i for i in range(4)]
    q = [S + 8 + i for i in range(4)]; rr = [S + 12 + i for i in range(4)]
    sd = [S + 16 + i for i in range(4)]; T = S + 20
    for k in range(4):
        b = V + 8 * k
        a(f"v_add_f32 v{sm[k]}, v{b}, v{b+1}")
        a(f"v_add_f32 v{tm[k]}, v{b+2}, v{b+3}")
        a(f"v_add_f32 v{q[k]}, v{b+4}, v{b+5}")
        a(f"v_add_f32 v{rr[k]}, v{b+6}, v{b+7}")
    for k in range(4):
        a(f"v_add_f32 v{sm[k]}, v{sm[k]}, v{tm[k]}")
        a(f"v_add_f32 v{q[k]}, v{q[k]}, v{rr[k]}")
    for k in range(4):
        a(f"v_add_f32 v{sm[k]}, v{sm[k]}, v{q[k]}")
    allreduce(a, sm, tm)
    for k in range(4):
        a(f"v_mul_f32 v{sm[k]}, s{sInvD}, v{sm[k]}")
    chains = []
    for k in range(4):
        b = V + 8 * k
        ch = []
        for c in range(0, 8, 2):
            ch.append(f"v_sub_f32 v{tm[k]}, v{b+c}, v{sm[k]}")
            ch.append(f"v_sub_f32 v{rr[k]}, v{b+c+1}, v{sm[k]}")
            if c == 0:
                ch.append(f"v_mul_f32 v{q[k]}, v{tm[k]}, v{tm[k]}")
                ch.append(f"v_mul_f32 v{sd[k]}, v{rr[k]}, v{rr[k]}")
            else:
                ch.append(f"v_fmac_f32 v{q[k]}, v{tm[k]}, v{tm[k]}")
                ch.append(f"v_fmac_f32 v{sd[k]}, v{rr[k]}, v{rr[k]}")
        ch.append(f"v_add_f32 v{q[k]}, v{q[k]}, v{sd[k]}")
        chains.append(ch)
    interleave(a, chains)
    allreduce(a, q, tm)
    for k in range(4):
        a(f"v_mul_f32 v{q[k]}, s{sInvD}, v{q[k]}")
    interleave(a, [bf16r_pair_l(sm[k], q[k], tm[k]) for k in range(4)])
    for k in range(4):
        a(f"v_add_f32 v{q[k]}, s{sEps}, v{q[k]}")
    interleave(a, [bf16r_pair_l(q[0], q[1], tm[0]), bf16r_pair_l(q[2], q[3], tm[1])])
    for k in range(4):
        a(f"v_sqrt_f32 v{sd[k]}, v{q[k]}")
    for k in range(4):
        a(f"v_rcp_f32 v{rr[k]}, v{sd[k]}")
    for k in range(4):
        a(f"v_fma_f32 v{tm[k]}, -v{sd[k]}, v{sd[k]}, v{q[k]}")
    for k in range(4):
        a(f"v_mul_f32 v{rr[k]}, 0.5, v{rr[k]}")
    for k in range(4):
        a(f"v_fma_f32 v{sd[k]}, v{tm[k]}, v{rr[k]}, v{sd[k]}")
    interleave(a, [bf16r_pair_l(sd[0], sd[1], tm[0]), bf16r_pair_l(sd[2], sd[3], tm[1])])
    for k in range(4):
        a(f"v_rcp_f32 v{rr[k]}, v{sd[k]}")
    for k in range(4):
        a(f"v_fma_f32 v{tm[k]}, -v{sd[k]}, v{rr[k]}, 1.0")
    for k in range(4):
        a(f"v_fma_f32 v{rr[k]}, v{tm[k]}, v{rr[k]}, v{rr[k]}")
    chains = []
    for k in range(4):
        b = V + 8 * k
        t0, t1 = T + 3 * k, T + 3 * k + 1
        ch = []
        for c in range(0, 8, 2):
            x, y = b + c, b + c + 1
            ch += [f"v_sub_f32 v{x}, v{x}, v{sm[k]}", f"v_sub_f32 v{y}, v{y}, v{sm[k]}"]
            ch += bf16r_pair_l(x, y, t0)
            ch += [f"v_mul_f32 v{t0}, v{x}, v{rr[k]}", f"v_mul_f32 v{t1}, v{y}, v{rr[k]}",
                   f"v_fma_f32 v{x}, -v{t0}, v{sd[k]}, v{x}", f"v_fma_f32 v{y}, -v{t1}, v{sd[k]}, v{y}",
                   f"v_fma_f32 v{x}, v{x}, v{rr[k]}, v{t0}", f"v_fma_f32 v{y}, v{y}, v{rr[k]}, v{t1}"]
            ch += bf16r_pair_l(x, y, t0)
        chains.append(ch)
    interleave(a, chains)

def exp_acc(a, dst, x, t0, t1, sL2E, sL2ELO, sLN2):
    a(f"v_mul_f32 v{t0}, s{sL2E}, v{x}")
    a(f"v_fma_f32 v{t1}, v{x}, s{sL2E}, -v{t0}")
    a(f"v_fma_f32 v{t1}, v{x}, s{sL2ELO}, v{t1}")
    a(f"v_exp_f32 v{dst}, v{t0}")
    a(f"v_mul_f32 v{t1}, s{sLN2}, v{t1}")
    a(f"v_fma_f32 v{dst}, v{dst}, v{t1}, v{dst}")

def kernel_header(a, name):
    a.raw(f".globl {name}")
    a.raw(".p2align 8")
    a.raw(f".type {name},@function")
    a.raw(f"{name}:")
    a.hist = []

def kd(name, vgpr, sgpr=100):
    v = (vgpr + 7) // 8 * 8
    return f""".amdhsa_kernel {name}
  .amdhsa_next_free_vgpr {v}
  .amdhsa_next_free_sgpr {sgpr}
  .amdhsa_accum_offset {v}
  .amdhsa_group_segment_fixed_size 0
  .amdhsa_kernarg_size 120
  .amdhsa_user_sgpr_count 2
  .amdhsa_user_sgpr_kernarg_segment_ptr 1
  .amdhsa_system_sgpr_workgroup_id_x 1
  .amdhsa_float_denorm_mode_32 3
.end_amdhsa_kernel
"""

K1_LDS = 17408
def gen_k1(a):
    kernel_header(a, "k1_kernel")
    a.rt_start()
    a("s_cmp_ge_u32 s2, 640")
    a("s_cbranch_scc1 K1_END")
    a("s_cmp_lt_u32 s2, 128")
    a("s_cbranch_scc1 K1_LN")
    a.stamp(0)
    a("""
    s_sub_u32 s2, s2, 128
    s_load_dwordx4 s[4:7], s[0:1], 8
    s_load_dwordx4 s[8:11], s[0:1], 24
    s_load_dwordx2 s[12:13], s[0:1], 40
    s_load_dwordx2 s[14:15], s[0:1], 112
    s_mov_b32 s50, 0x%x
    s_mov_b32 s51, 0x%x
    s_mov_b32 s52, 0x%x
    s_mov_b32 s53, 0x%x
    v_and_b32 v1, 127, v0
    v_lshlrev_b32 v1, 1, v1
    s_lshl_b32 s3, s2, 8
    v_add_u32 v1, s3, v1
    s_lshl_b32 s3, s2, 1
    v_mov_b32 v7, s3
    s_waitcnt lgkmcnt(0)
    """ % (L2E, L2E_LO, LN2, INV2PI))
    srd(a, 16, 4, 5, D * N * 2); srd(a, 20, 6, 7, D * N * 2); srd(a, 24, 8, 9, D * N * 2); srd(a, 28, 10, 11, D * N * 2)
    srd(a, 32, 12, 13, D * 2)
    a("""
    buffer_load_ushort v6, v7, s[32:35], 0 offen
    buffer_load_ushort v2, v1, s[16:19], 0 offen
    buffer_load_ushort v3, v1, s[20:23], 0 offen
    buffer_load_ushort v4, v1, s[24:27], 0 offen
    buffer_load_ushort v5, v1, s[28:31], 0 offen
    """)
    srd(a, 36, 14, 15, D * L * 2, WS_R16); srd(a, 40, 14, 15, D * 4, WS_SCL)
    a("""
    v_and_b32 v10, 15, v0
    v_bfe_u32 v11, v0, 4, 2
    v_lshrrev_b32 v12, 6, v0
    """)
    a("""
    v_lshrrev_b32 v13, 3, v10
    v_and_b32 v14, 7, v10
    v_lshl_add_u32 v20, v13, 7, v14
    """)
    a("""
    v_lshrrev_b32 v13, 2, v10
    v_and_b32 v14, 3, v10
    v_lshlrev_b32 v13, 7, v13
    v_lshl_add_u32 v13, v14, 1, v13
    v_add_u32 v13, 256, v13
    v_subrev_u32 v14, 8, v10
    v_lshrrev_b32 v15, 1, v14
    v_and_b32 v14, 1, v14
    v_lshlrev_b32 v15, 7, v15
    v_lshl_add_u32 v15, v14, 2, v15
    v_add_u32 v15, 512, v15
    v_cmp_gt_u32 vcc, 8, v10
    v_cndmask_b32 v21, v15, v13, vcc
    """)
    a("""
    v_lshlrev_b32 v13, 7, v10
    v_add_u32 v13, 1024, v13
    v_cmp_gt_u32 vcc, 9, v10
    v_cndmask_b32 v22, 0, v13, vcc
    v_lshlrev_b32 v23, 3, v10
    v_cvt_f32_u32 v20, v20
    v_cvt_f32_u32 v21, v21
    v_cvt_f32_u32 v22, v22
    v_cvt_f32_u32 v23, v23
    """)
    a("v_lshlrev_b32 v13, 3, v0\nv_sub_u32 v13, 2047, v13")
    chains = []
    for e in range(8):
        t = 64 + 6 * e; m = 54 + 2 * e
        chains.append(f"""
        v_subrev_u32 v{t}, {e}, v13
        v_cvt_f32_u32 v{t}, v{t}
        v_cvt_pk_bf16_f32 v{t}, v{t}, v{t}
        v_lshlrev_b32 v{t}, 16, v{t}
        v_cvt_u32_f32 v{t}, v{t}
        v_lshrrev_b32 v{t+1}, 7, v{t}
        v_and_b32 v{t+2}, 7, v{t}
        v_bfe_u32 v{t+3}, v{t}, 3, 4
        v_lshl_add_u32 v{t+4}, v{t+1}, 3, v{t+2}
        v_lshrrev_b32 v{t+5}, 1, v{t+2}
        v_lshl_add_u32 v{t+5}, v{t+1}, 2, v{t+5}
        v_add_u32 v{t+5}, 8, v{t+5}
        v_cmp_gt_u32 s[{m}:{m+1}], 2, v{t+1}
        v_cndmask_b32 v{t+4}, v{t+5}, v{t+4}, s[{m}:{m+1}]
        v_lshrrev_b32 v{t+5}, 2, v{t+2}
        v_lshl_add_u32 v{t+5}, v{t+1}, 1, v{t+5}
        v_add_u32 v{t+5}, 16, v{t+5}
        v_cmp_gt_u32 s[{m}:{m+1}], 4, v{t+1}
        v_cndmask_b32 v{t+4}, v{t+5}, v{t+4}, s[{m}:{m+1}]
        v_add_u32 v{t+5}, 24, v{t+1}
        v_cmp_gt_u32 s[{m}:{m+1}], 8, v{t+1}
        v_cndmask_b32 v{t+4}, v{t+5}, v{t+4}, s[{m}:{m+1}]
        v_lshl_add_u32 v{t+4}, v{t+4}, 4, v{t+3}
        v_lshlrev_b32 v{112+e}, 2, v{t+4}
        """.split("\n"))
    interleave(a, chains)
    a("""
    s_waitcnt vmcnt(0)
    v_lshlrev_b32 v2, 16, v2
    v_lshlrev_b32 v3, 16, v3
    v_lshlrev_b32 v4, 16, v4
    v_lshlrev_b32 v5, 16, v5
    v_lshlrev_b32 v6, 16, v6
    """)
    a.stamp(1)
    exp_acc(a, 8, 6, 13, 14, 50, 51, 52)
    exp_acc(a, 9, 2, 15, 16, 50, 51, 52)
    bf16r_pair(a, 8, 9, 13)
    a("""
    v_mul_f32 v24, -v9, v8
    v_mul_f32 v25, v3, v8
    v_mul_f32 v26, v4, v8
    v_mul_f32 v27, v5, v8
    v_mul_f32 v24, s50, v24
    v_mul_f32 v25, s53, v25
    v_add_f32 v26, v26, v26
    v_add_f32 v27, v27, v27
    v_and_b32 v13, 127, v0
    v_lshlrev_b32 v13, 4, v13
    ds_write_b128 v13, v[24:27]
    s_waitcnt lgkmcnt(0)
    s_barrier
    """)
    a.stamp(2)
    a("""
    v_lshlrev_b32 v13, 5, v12
    v_add_u32 v13, v13, v11
    v_lshlrev_b32 v13, 4, v13
    """)
    for qq in range(8):
        a(f"ds_read_b128 v[{64+4*qq}:{67+4*qq}], v13 offset:{64*qq}")
    for r in range(12):
        a(f"v_mov_b32 v{100+r}, 0")
    a("s_waitcnt lgkmcnt(0)")
    def cexp_l(p, er, fi, o_r, o_i, t):
        return [f"v_mul_f32 v{t}, v{er}, v{p}", f"v_mul_f32 v{t+1}, v{fi}, v{p}", f"v_exp_f32 v{t}, v{t}",
                f"v_fract_f32 v{t+1}, v{t+1}", f"v_cos_f32 v{o_r}, v{t+1}", f"v_sin_f32 v{o_i}, v{t+1}",
                f"v_mul_f32 v{o_r}, v{t}, v{o_r}", f"v_mul_f32 v{o_i}, v{t}, v{o_i}"]
    for qq in range(8):
        er, fi, cr, ci = 64 + 4 * qq, 65 + 4 * qq, 66 + 4 * qq, 67 + 4 * qq
        par = qq & 1
        yb = 28 + 2 * par
        chains = [cexp_l(23, er, fi, yb, yb + 1, 32)]
        xbs = []
        for tl in range(3):
            t = 34 + 4 * tl; e_r, e_i = t + 2, t + 3
            xb = 46 + 6 * par + 2 * tl
            xbs.append(xb)
            chains.append(cexp_l(20 + tl, er, fi, e_r, e_i, t) + [
                f"v_mul_f32 v{xb}, v{cr}, v{e_r}", f"v_mul_f32 v{xb+1}, -v{cr}, v{e_i}",
                f"v_fma_f32 v{xb}, -v{ci}, v{e_i}, v{xb}", f"v_fma_f32 v{xb+1}, -v{ci}, v{e_r}, v{xb+1}"])
        interleave(a, chains)
        for h in range(2):
            for tl in range(3):
                a(f"v_mfma_f32_16x16x4_f32 v[{100+4*tl}:{103+4*tl}], v{xbs[tl]+h}, v{yb+h}, v[{100+4*tl}:{103+4*tl}]")
    a.stamp(3)
    a("""
    v_mul_u32_u24 v13, 3072, v12
    v_lshl_add_u32 v13, v11, 8, v13
    v_lshl_add_u32 v13, v10, 2, v13
    """)
    for tl in range(3):
        for r in range(4):
            a(f"ds_write_b32 v13, v{100+4*tl+r} offset:{2048 + tl*1024 + r*64}")
    a("s_waitcnt lgkmcnt(0)\ns_barrier")
    a.stamp(4)
    for e in range(8):
        for w in range(4):
            a(f"ds_read_b32 v{72+4*e+w}, v{112+e} offset:{2048 + 3072*w}")
    a("s_waitcnt lgkmcnt(0)")
    for e in range(8):
        b = 72 + 4 * e
        a(f"v_add_f32 v{b}, v{b}, v{b+1}\nv_add_f32 v{b+2}, v{b+2}, v{b+3}")
    for e in range(8):
        b = 72 + 4 * e
        a(f"v_add_f32 v{64+e}, v{b}, v{b+2}")
    a.stamp(5)
    a("""
    v_max3_f32 v14, abs(v64), abs(v65), abs(v66)
    v_max3_f32 v15, abs(v67), abs(v68), abs(v69)
    v_max3_f32 v14, abs(v70), abs(v71), v14
    v_max_f32 v14, v14, v15
    """)
    allreduce(a, [14], [15], op="v_max_f32")
    a("""
    v_lshlrev_b32 v16, 2, v12
    ds_write_b32 v16, v14 offset:14336
    s_waitcnt lgkmcnt(0)
    s_barrier
    v_mov_b32 v16, 0
    ds_read_b128 v[16:19], v16 offset:14336
    s_waitcnt lgkmcnt(0)
    v_max3_f32 v14, v16, v17, v18
    v_max_f32 v14, v14, v19
    v_frexp_exp_i32_f32 v15, v14
    v_mov_b32 v16, -100
    v_mov_b32 v17, 100
    v_med3_i32 v15, v15, v16, v17
    v_sub_u32 v16, 15, v15
    """)
    for e in range(8):
        a(f"v_ldexp_f32 v{64+e}, v{64+e}, v16")
    for e in range(8):
        a(f"v_cvt_f16_f32 v{64+e}, v{64+e}")
    for e in range(4):
        a(f"v_pack_b32_f16 v{72+e}, v{64+2*e}, v{65+2*e}")
    a("""
    s_lshl_b32 s3, s2, 12
    v_lshlrev_b32 v13, 4, v0
    v_add_u32 v13, s3, v13
    buffer_store_dwordx4 v[72:75], v13, s[36:39], 0 offen
    v_subrev_u32 v15, 15, v15
    v_ldexp_f32 v17, 1.0, v15
    s_lshl_b32 s3, s2, 2
    v_mov_b32 v18, s3
    v_cmp_eq_u32 vcc, 0, v0
    s_and_saveexec_b64 s[44:45], vcc
    buffer_store_dword v17, v18, s[40:43], 0 offen
    """)
    a.stamp(6)
    a.dump_stamps(7, 100, 0)
    a.rt_end(0)
    a("s_endpgm")
    a.label("K1_LN")
    a.hist = []
    a.stamp(0)
    a("""
    s_load_dwordx2 s[4:5], s[0:1], 0
    s_load_dwordx2 s[14:15], s[0:1], 112
    s_setprio 3
    s_mov_b32 s3, s2
    s_mov_b32 s50, 0x3727c5ac
    s_mov_b32 s51, 0x3b000000
    v_and_b32 v1, 63, v0
    v_lshrrev_b32 v2, 6, v0
    s_lshl_b32 s6, s3, 14
    v_lshlrev_b32 v3, 12, v2
    v_lshl_add_u32 v3, v1, 4, v3
    v_add_u32 v3, s6, v3
    s_waitcnt lgkmcnt(0)
    """)
    srd(a, 16, 4, 5, L * D * 2); srd(a, 20, 14, 15, L * D * 2, WS_UT)
    for k in range(4):
        a(f"buffer_load_dwordx4 v[{16+4*k}:{19+4*k}], v3, s[16:19], 0 offen offset:{1024*k}")
    a("s_waitcnt vmcnt(0)")
    for k in range(4):
        for e in range(4):
            a(f"v_lshlrev_b32 v{32+8*k+2*e}, 16, v{16+4*k+e}")
            a(f"v_and_b32 v{33+8*k+2*e}, 0xffff0000, v{16+4*k+e}")
    a.stamp(1)
    layernorm4(a, 32, 64, 50, 51)
    a.stamp(2)
    a("v_mul_u32_u24 v4, 264, v1\nv_lshl_add_u32 v4, v2, 3, v4")
    for c in range(8):
        a(f"v_cvt_pk_bf16_f32 v{16+2*c}, v{32+c}, v{40+c}")
        a(f"v_cvt_pk_bf16_f32 v{17+2*c}, v{48+c}, v{56+c}")
    for c in range(8):
        a(f"ds_write_b64 v4, v[{16+2*c}:{17+2*c}] offset:{32*c}")
    a("s_waitcnt lgkmcnt(0)\ns_barrier")
    a("""
    v_lshrrev_b32 v5, 1, v0
    v_lshlrev_b32 v6, 5, v5
    v_lshrrev_b32 v5, 3, v5
    v_lshl_add_u32 v6, v5, 3, v6
    v_and_b32 v5, 1, v0
    v_lshl_add_u32 v6, v5, 4, v6
    v_lshlrev_b32 v7, 4, v0
    v_add_u32 v7, s6, v7
    """)
    for i in range(4):
        a(f"ds_read_b64 v[{16+4*i}:{17+4*i}], v6 offset:{4224*i}")
        a(f"ds_read_b64 v[{18+4*i}:{19+4*i}], v6 offset:{4224*i+8}")
    a("s_waitcnt lgkmcnt(0)")
    for i in range(4):
        if i == 0:
            a(f"buffer_store_dwordx4 v[16:19], v7, s[20:23], 0 offen")
        else:
            a(f"v_add_u32 v7, 4096, v7")
            a(f"buffer_store_dwordx4 v[{16+4*i}:{19+4*i}], v7, s[20:23], 0 offen")
    a.stamp(3)
    a.dump_stamps(4, 100, 1)
    a.rt_end(0)
    a.label("K1_END")
    a("s_endpgm")
    return kd("k1_kernel", 120)

def main(out_path, diag=False):
    import gen2, gen4 as gen3, gen5
    Asm.DIAG = diag
    hdr = open("sequential_preLN__ssm_conv_s4d__mixer_channel_mlp__prompt.s.ref").read().split("; Override")[0]
    b = Asm()
    kds = []
    kds.append(gen5.gen_k1(b))
    kds.append(gen5.gen_k2(b))
    kds.append(gen5.gen_k3(b))
    k4, lds4 = gen3.gen_k4(b); kds.append(k4)
    k5, lds5 = gen3.gen_k5(b); kds.append(k5)
    launches = [("k1_kernel", 304, 512, gen5.K1_LDS), ("k2_kernel", 512, 256, gen5.K2_LDS), ("k3_kernel", 128, 512, gen5.K3_LDS),
                ("k4_kernel", 240, 512, lds4), ("k5_kernel", 256, 512, lds5)]
    a = Asm()
    a.raw(hdr.rstrip())
    for (n, g, bl, l) in launches:
        a.raw(f"; @launch kernel={n} grid=({g},1,1) block=({bl},1,1) lds={l}")
    a.raw('.amdgcn_target "amdgcn-amd-amdhsa--gfx950"')
    a.raw(".text")
    a.raw(b.text())
    a.raw('.section .rodata,"a"')
    for k in kds:
        a.raw(".p2align 6")
        a.raw(k)
    open(out_path, "w").write(a.text())
    print("nops inserted:", b.nops_inserted)

if __name__ == "__main__":
    main(sys.argv[1] if len(sys.argv) > 1 else "sequential_preLN__ssm_conv_s4d__mixer_channel_mlp__prompt.s", len(sys.argv) > 2)
```

```python
from asmlib import Asm
from gen import *
from gen5 import layernormN

WS_END = WS_HH + L * F * 2
def gen_gemm(a, name, *, RT, CT, BK, NST, NBUF, n_rt, n_ct, r_ws, r_ld, c_ws, c_ld, epi_pre, epilogue, last_c_limit=None, ln_phase=False):
    SL = BK // 8; ROWB = BK * 2
    RBUF = RT * ROWB; CBUF = CT * ROWB; STG = RBUF + CBUF
    lds = NBUF * STG
    LNL = lds
    if ln_phase: lds += 17408
    npc = STG // 1024; nR = RBUF // 1024
    NP = (npc + 7) // 8
    rpp = 1024 // ROWB
    fr = RT // 32; fc = CT // 64
    KS = BK // 32
    ACC = 24; nacc = fr * fc * 4
    FRG = ACC + nacc; nfr = (fr + fc) * 4
    ADDR = FRG + KS * nfr
    EPI = ADDR + 40
    vtop = max(EPI + 16, 96)
    xm = min(SL, 16) - 1
    kernel_header(a, name)
    a.rt_start()
    nwg = n_rt * n_ct
    a(f"""
    s_cmp_ge_u32 s2, {nwg}
    s_cbranch_scc1 {name}_END
    s_load_dwordx4 s[12:15], s[0:1], 104
    s_load_dwordx2 s[36:37], s[0:1], 0
    s_load_dwordx4 s[4:7], s[0:1], 72
    s_load_dwordx4 s[8:11], s[0:1], 88
    s_and_b32 s40, s2, {n_ct - 1}
    s_lshr_b32 s41, s2, {n_ct.bit_length() - 1}
    v_and_b32 v1, 63, v0
    v_lshrrev_b32 v2, 6, v0
    v_and_b32 v5, 15, v0
    v_bfe_u32 v6, v0, 4, 2
    v_lshrrev_b32 v7, 8, v0
    v_bfe_u32 v8, v0, 6, 2
    v_readfirstlane_b32 s60, v2
    s_waitcnt lgkmcnt(0)
    """)
    a.stamp(0)
    srd(a, 16, 14, 15, WS_END)
    a("s_lshl_b32 s60, s60, 10")
    a(f"""
    v_lshrrev_b32 v3, {SL.bit_length() - 1}, v1
    v_and_b32 v4, {SL - 1}, v1
    s_mul_i32 s42, s41, {RT}
    s_mul_i32 s43, s40, {CT}
    s_mov_b32 s46, {r_ld}
    s_mov_b32 s47, {c_ld}
    s_mov_b32 s48, 0x{r_ws:x}
    s_mov_b32 s49, 0x{c_ws:x}
    """)
    vA = [ADDR + i for i in range(NP)]
    vAL = [ADDR + NP + i for i in range(NP)]
    for i in range(NP):
        a(f"""
        v_add_u32 v9, {8*i}, v2
        v_subrev_u32 v10, {npc}, v9
        v_cmp_gt_u32 vcc, {npc}, v9
        v_cndmask_b32 v9, v10, v9, vcc
        v_mul_u32_u24 v10, {rpp}, v9
        v_add_u32 v10, v10, v3
        v_and_b32 v11, {xm}, v10
        v_xor_b32 v11, v11, v4
        v_add_u32 v12, s42, v10
        v_mul_lo_u32 v12, v12, s46
        v_add_u32 v12, s48, v12
        v_subrev_u32 v13, {RT}, v10
        v_add_u32 v13, s43, v13
        v_mul_lo_u32 v13, v13, s47
        v_add_u32 v13, s49, v13
        v_cmp_gt_u32 s[50:51], {nR}, v9
        v_cndmask_b32 v12, v13, v12, s[50:51]
        v_lshl_add_u32 v{vA[i]}, v11, 4, v12
        """)
        if last_c_limit is not None:
            a(f"""
            v_cmp_le_u32 vcc, {last_c_limit}, v11
            s_andn2_b64 vcc, vcc, s[50:51]
            v_mov_b32 v13, 0x40000000
            v_cndmask_b32 v13, 0, v13, vcc
            v_add_u32 v{vAL[i]}, v{vA[i]}, v13
            """)
    for i in range(NP):
        a(f"""
        s_add_u32 s{64+i}, s60, {8192*i}
        s_cmp_ge_u32 s{64+i}, {STG}
        s_cselect_b32 s52, {STG}, 0
        s_sub_u32 s{64+i}, s{64+i}, s52
        """)
    issued = []
    def dma1(s, i):
        base = (s % NBUF) * STG
        va = vAL[i] if (last_c_limit is not None and s == NST - 1) else vA[i]
        a(f"s_add_u32 m0, s{64+i}, {base}")
        a(f"s_mov_b32 s44, {s * ROWB}")
        sc = " sc1" if (ln_phase and i > 0) else ""
        a(f"buffer_load_dwordx4 v{va}, s[16:19], s44 offen{sc} lds")
        issued.append(s)
    npre = min(NBUF - 1, NST)
    if not ln_phase:
        for s in range(npre):
            for i in range(NP): dma1(s, i)
    else:
        assert nR >= 8
        for s in range(npre): dma1(s, 0)
        ln_block(a, name, LNL)
        for s in range(npre):
            for i in range(1, NP): dma1(s, i)
    vF = [ADDR + 2 * NP + ks for ks in range(KS)]
    vG = [ADDR + 2 * NP + KS + ks for ks in range(KS)]
    assert 2 * NP + 6 * KS <= 40
    for ks in range(KS):
        a(f"""
        v_and_b32 v9, {xm}, v5
        v_xor_b32 v9, v9, v6
        v_xor_b32 v9, {4*ks}, v9
        v_lshlrev_b32 v9, 4, v9
        v_mul_u32_u24 v10, {RT//2}, v7
        v_add_u32 v10, v10, v5
        v_mul_u32_u24 v10, {ROWB}, v10
        v_add_u32 v{vF[ks]}, v9, v10
        v_mul_u32_u24 v10, {CT//4}, v8
        v_add_u32 v10, v10, v5
        v_mul_u32_u24 v10, {ROWB}, v10
        v_add_u32 v10, v9, v10
        v_add_u32 v{vG[ks]}, {RBUF}, v10
        v_add_u32 v{vF[ks] + 2*KS}, 0x10000, v{vF[ks]}
        v_add_u32 v{vG[ks] + 2*KS}, 0x10000, v{vG[ks]}
        v_add_u32 v{vF[ks] + 4*KS}, 0x20000, v{vF[ks]}
        v_add_u32 v{vG[ks] + 4*KS}, 0x20000, v{vG[ks]}
        """)
    for r in range(nacc):
        a(f"v_mov_b32 v{ACC + r}, 0")
    def frg(ks, j): b = FRG + ks * nfr + 4 * j; return f"v[{b}:{b+3}]"
    def fread(s, ks):
        base = (s % NBUF) * STG
        for t in range(fr):
            off = base + 16 * t * ROWB
            a(f"ds_read_b128 {frg(ks, t)}, v{vF[ks] + 2*KS*(off >> 16)} offset:{off & 0xffff}")
        for t in range(fc):
            off = base + 16 * t * ROWB
            a(f"ds_read_b128 {frg(ks, fr + t)}, v{vG[ks] + 2*KS*(off >> 16)} offset:{off & 0xffff}")
    def accr(i, j): b = ACC + 4 * (i * fc + j); return f"v[{b}:{b+3}]"
    nf = fr + fc
    P = dict(ACC=ACC, fr=fr, fc=fc, RT=RT, CT=CT, FRG=FRG, ADDR=ADDR, EPI=EPI)
    n_e = epi_pre(a, P)
    issued.extend(["e"] * n_e)
    for s in range(NST):
        dg = (s == 4)
        inflight_after = min(NST - 1, s + NBUF - 2) - s
        lastpos = max(k for k, t in enumerate(issued) if t == s)
        a(f"s_waitcnt vmcnt({len(issued) - 1 - lastpos})")
        a("s_barrier")
        if s == 0: a.stamp(1)
        if dg: a.stamp(4)
        for ks in range(KS): fread(s, ks)
        M = KS * fr * fc
        sn = s + NBUF - 1
        npairs = NP if sn < NST else 0
        done = 0; mcount = 0
        for ks in range(KS):
            a(f"s_waitcnt lgkmcnt({min(15, nf * (KS - 1 - ks))})")
            if dg: a.stamp(5 + ks)
            for i in range(fr):
                for j in range(fc):
                    a(f"v_mfma_f32_16x16x32_bf16 {accr(i, j)}, {frg(ks, i)}, {frg(ks, fr + j)}, {accr(i, j)}")
                    mcount += 1
                    while done < npairs and done * M < mcount * npairs:
                        dma1(sn, done); done += 1
        assert done == npairs
        if dg: a.stamp(13)
    a.stamp(2)
    epilogue(a, P)
    a.stamp(3)
    a.dump_stamps(14, 100, 4 if name.startswith("k4") else 5)
    a.rt_end(1 if name.startswith("k4") else 2)
    a.label(f"{name}_END")
    a("s_endpgm")
    return kd(name, vtop), lds

def ln_block(a, name, LNL):
    a(f"""
    s_cmp_ge_u32 s2, 128
    s_cbranch_scc1 {name}_NOLN
    s_mov_b32 s50, 0x3727c5ac
    s_mov_b32 s51, 0x3b000000
    s_lshl_b32 s53, s2, 14
    v_lshlrev_b32 v9, 11, v2
    v_lshl_add_u32 v9, v1, 4, v9
    v_add_u32 v9, s53, v9
    v_lshlrev_b32 v10, 4, v0
    v_add_u32 v10, s53, v10
    v_add_u32 v11, 8192, v10
    """)
    srd(a, 20, 14, 15, L * D * 2, WS_T3)
    a("""
    buffer_load_dwordx4 v[72:75], v10, s[20:23], 0 offen
    buffer_load_dwordx4 v[76:79], v11, s[20:23], 0 offen
    """)
    srd(a, 24, 36, 37, L * D * 2)
    for k in range(2):
        a(f"buffer_load_dwordx4 v[{16+4*k}:{19+4*k}], v9, s[24:27], 0 offen offset:{1024*k}")
    srd(a, 24, 14, 15, L * D * 2, WS_H); srd(a, 28, 14, 15, L * D * 2, WS_Z)
    a(f"""
    v_lshrrev_b32 v12, 1, v0
    v_lshlrev_b32 v13, 5, v12
    v_lshrrev_b32 v12, 3, v12
    v_lshl_add_u32 v13, v12, 3, v13
    v_and_b32 v12, 1, v0
    v_lshl_add_u32 v13, v12, 4, v13
    v_add_u32 v13, {LNL}, v13
    v_mul_u32_u24 v14, 264, v1
    v_lshl_add_u32 v14, v2, 2, v14
    v_add_u32 v14, {LNL}, v14
    s_waitcnt vmcnt(2)
    """)
    for i in range(2):
        a(f"ds_write_b64 v13, v[{72+4*i}:{73+4*i}] offset:{8448*i}")
        a(f"ds_write_b64 v13, v[{74+4*i}:{75+4*i}] offset:{8448*i+8}")
    a("s_waitcnt lgkmcnt(0)\ns_barrier")
    for c in range(8):
        a(f"ds_read_b32 v{72+c}, v14 offset:{32*c}")
    a("s_waitcnt vmcnt(0) lgkmcnt(0)")
    for k in range(2):
        for e in range(4):
            a(f"v_lshlrev_b32 v{32+8*k+2*e}, 16, v{16+4*k+e}")
            a(f"v_and_b32 v{33+8*k+2*e}, 0xffff0000, v{16+4*k+e}")
    for c in range(8):
        a(f"v_lshlrev_b32 v{48+c}, 16, v{72+c}\nv_and_b32 v{56+c}, 0xffff0000, v{72+c}")
    for c in range(8):
        a(f"v_add_f32 v{32+c}, v{32+c}, v{48+c}\nv_add_f32 v{40+c}, v{40+c}, v{56+c}")
    for k in range(2):
        for e in range(4):
            a(f"v_cvt_pk_bf16_f32 v{16+4*k+e}, v{32+8*k+2*e}, v{33+8*k+2*e}")
    for k in range(2):
        for e in range(4):
            a(f"v_lshlrev_b32 v{32+8*k+2*e}, 16, v{16+4*k+e}")
            a(f"v_and_b32 v{33+8*k+2*e}, 0xffff0000, v{16+4*k+e}")
    for k in range(2):
        a(f"buffer_store_dwordx4 v[{16+4*k}:{19+4*k}], v9, s[24:27], 0 offen offset:{1024*k}")
    layernormN(a, 2, 32, 48, 50, 51)
    layernormN(a, 2, 32, 48, 50, 51)
    for k in range(2):
        for e in range(4):
            a(f"v_cvt_pk_bf16_f32 v{72+4*k+e}, v{32+8*k+2*e}, v{33+8*k+2*e}")
    for k in range(2):
        a(f"buffer_store_dwordx4 v[{72+4*k}:{75+4*k}], v9, s[28:31], 0 offen offset:{1024*k} sc1")
    srd(a, 20, 12, 13, 256)
    a(f"""
    s_waitcnt vmcnt(0)
    s_barrier
    s_lshr_b32 s53, s2, 3
    s_lshl_b32 s53, s53, 2
    v_mov_b32 v10, s53
    v_mov_b32 v11, 1
    v_cmp_eq_u32 vcc, 0, v0
    s_and_saveexec_b64 s[30:31], vcc
    buffer_atomic_add v11, v10, s[20:23], 0 offen sc1
    s_mov_b64 exec, s[30:31]
    """)
    a.label(f"{name}_NOLN", fence=True)
    srd(a, 20, 12, 13, 256)
    a(f"""
    s_cmp_lg_u32 s60, 0
    s_cbranch_scc1 {name}_NOPOLL
    s_lshl_b32 s53, s40, 2
    v_mov_b32 v10, s53
    """)
    a.label(f"{name}_POLL")
    a(f"""
    buffer_load_dword v11, v10, s[20:23], 0 offen sc1
    s_waitcnt vmcnt(0)
    v_readfirstlane_b32 s53, v11
    s_cmp_ge_u32 s53, 8
    s_cbranch_scc1 {name}_NOPOLL
    s_sleep 16
    """)
    a.branch_back("s_branch", f"{name}_POLL")
    a.label(f"{name}_NOPOLL", fence=True)
    a("s_barrier")

def pre_k4(a, P):
    RT, CT, E = P["RT"], P["CT"], P["EPI"]
    srd(a, 24, 4, 5, F * 2)
    srd(a, 28, 14, 15, L * F * 2, WS_HH)
    a(f"""
    s_mul_i32 s42, s41, {RT}
    v_mul_u32_u24 v9, {RT//2}, v7
    v_lshl_add_u32 v9, v6, 2, v9
    v_add_u32 v9, s42, v9
    s_mul_i32 s42, s40, {CT}
    v_mul_u32_u24 v10, {CT//4}, v8
    v_add_u32 v10, v10, v5
    v_add_u32 v10, s42, v10
    s_mov_b32 s43, {F*2}
    v_mul_lo_u32 v10, v10, s43
    v_lshlrev_b32 v11, 1, v9
    v_add_u32 v10, v10, v11
    s_mov_b32 s45, 0x3d372713
    s_mov_b32 s46, 0xc0135761
    """)
    for i in range(P["fr"]):
        a(f"buffer_load_dwordx2 v[{E+2*i}:{E+2*i+1}], v11, s[24:27], 0 offen offset:{32*i}")
    return P["fr"]

def epi_k4(a, P):
    ACC, fr, fc, RT, CT, E = P["ACC"], P["fr"], P["fc"], P["RT"], P["CT"], P["EPI"]
    B = P["FRG"]
    for i in range(fr):
        a(f"""
        v_lshlrev_b32 v{B+4*i}, 16, v{E+2*i}
        v_and_b32 v{B+4*i+1}, 0xffff0000, v{E+2*i}
        v_lshlrev_b32 v{B+4*i+2}, 16, v{E+2*i+1}
        v_and_b32 v{B+4*i+3}, 0xffff0000, v{E+2*i+1}
        """)
    W0 = B + 4 * fr
    chains = []
    for i in range(fr):
        for j in range(fc):
            b = ACC + 4 * (i * fc + j)
            for h in range(2):
                x, y = b + 2 * h, b + 2 * h + 1
                W = W0 + 2 * (2 * (i * fc + j) + h)
                ch = bf16r_pair_l(x, y, W)
                ch += [f"v_add_f32 v{x}, v{x}, v{B+4*i+2*h}", f"v_add_f32 v{y}, v{y}, v{B+4*i+2*h+1}"]
                ch += bf16r_pair_l(x, y, W)
                ch += f"""
                v_mul_f32 v{W}, v{x}, v{x}
                v_mul_f32 v{W+1}, v{y}, v{y}
                v_mul_f32 v{W}, s45, v{W}
                v_mul_f32 v{W+1}, s45, v{W+1}
                v_fma_f32 v{W}, v{W}, v{x}, v{x}
                v_fma_f32 v{W+1}, v{W+1}, v{y}, v{y}
                v_mul_f32 v{W}, s46, v{W}
                v_mul_f32 v{W+1}, s46, v{W+1}
                v_exp_f32 v{W}, v{W}
                v_exp_f32 v{W+1}, v{W+1}
                v_add_f32 v{W}, 1.0, v{W}
                v_add_f32 v{W+1}, 1.0, v{W+1}
                v_rcp_f32 v{W}, v{W}
                v_rcp_f32 v{W+1}, v{W+1}
                v_mul_f32 v{x}, v{x}, v{W}
                v_mul_f32 v{y}, v{y}, v{W+1}
                v_cvt_pk_bf16_f32 v{b+h}, v{x}, v{y}
                """.split("\n")
                chains.append(ch)
    chains2 = []
    for ci, ch in enumerate(chains):
        chains2.append(ch)
    interleave(a, [c[:-2] for c in chains2])
    O0 = W0
    for i in range(fr):
        for j in range(fc):
            b = ACC + 4 * (i * fc + j)
            O = O0 + 2 * (i * fc + j) * 2
            a(f"v_cvt_pk_bf16_f32 v{O}, v{b}, v{b+1}")
            a(f"v_cvt_pk_bf16_f32 v{O+1}, v{b+2}, v{b+3}")
    for i in range(fr):
        a(f"""
        v_add_u32 v12, {16*i}, v9
        v_cmp_gt_u32 vcc, {F}, v12
        s_and_saveexec_b64 s[48:49], vcc
        """)
        for j in range(fc):
            O = O0 + 2 * (i * fc + j) * 2
            off = 16 * j * F * 2 + 32 * i
            so = off & ~0xfff
            if so:
                a(f"s_mov_b32 s44, {so}")
                a(f"buffer_store_dwordx2 v[{O}:{O+1}], v10, s[28:31], s44 offen offset:{off - so}")
            else:
                a(f"buffer_store_dwordx2 v[{O}:{O+1}], v10, s[28:31], 0 offen offset:{off}")
        a("s_mov_b64 exec, s[48:49]")

def pre_k5(a, P):
    RT, CT, E, fr, fc = P["RT"], P["CT"], P["EPI"], P["fr"], P["fc"]
    srd(a, 24, 8, 9, D * 2)
    srd(a, 28, 14, 15, L * D * 2, WS_H)
    srd(a, 32, 10, 11, L * D * 2)
    a(f"""
    s_mul_i32 s42, s41, {RT}
    v_mul_u32_u24 v9, {RT//2}, v7
    v_lshl_add_u32 v9, v6, 2, v9
    v_add_u32 v9, s42, v9
    s_mul_i32 s42, s40, {CT}
    v_mul_u32_u24 v10, {CT//4}, v8
    v_add_u32 v10, v10, v5
    v_add_u32 v10, s42, v10
    v_lshlrev_b32 v10, 10, v10
    v_lshlrev_b32 v11, 1, v9
    v_add_u32 v10, v10, v11
    """)
    for i in range(fr):
        a(f"buffer_load_dwordx2 v[{E+2*i}:{E+2*i+1}], v11, s[24:27], 0 offen offset:{32*i}")
    Hh = E + 4
    for i in range(fr):
        for j in range(fc):
            q = Hh + 2 * (i * fc + j)
            a(f"buffer_load_dwordx2 v[{q}:{q+1}], v10, s[28:31], 0 offen offset:{32*i}")
            assert fc == 1
    return fr + fr * fc

def epi_k5(a, P):
    ACC, fr, fc, RT, CT, E = P["ACC"], P["fr"], P["fc"], P["RT"], P["CT"], P["EPI"]
    T = E; Hh = E + 4
    W0 = P["FRG"]
    chains = []
    for i in range(fr):
        for j in range(fc):
            b = ACC + 4 * (i * fc + j); q = Hh + 2 * (i * fc + j)
            for h in range(2):
                x, y = b + 2 * h, b + 2 * h + 1
                W = W0 + 4 * (i * fc + j) + 2 * h
                ch = bf16r_pair_l(x, y, W)
                ch += [f"v_lshlrev_b32 v{W}, 16, v{T+2*i+h}", f"v_and_b32 v{W+1}, 0xffff0000, v{T+2*i+h}",
                       f"v_add_f32 v{x}, v{x}, v{W}", f"v_add_f32 v{y}, v{y}, v{W+1}"]
                ch += bf16r_pair_l(x, y, W)
                ch += [f"v_lshlrev_b32 v{W}, 16, v{q+h}", f"v_and_b32 v{W+1}, 0xffff0000, v{q+h}",
                       f"v_add_f32 v{x}, v{x}, v{W}", f"v_add_f32 v{y}, v{y}, v{W+1}",
                       f"v_cvt_pk_bf16_f32 v{q+h}, v{x}, v{y}"]
                chains.append(ch)
    interleave(a, chains)
    for i in range(fr):
        q = Hh + 2 * i
        a(f"buffer_store_dwordx2 v[{q}:{q+1}], v10, s[32:35], 0 offen offset:{32*i}")

def gen_k4(a, merge=False):
    return gen_gemm(a, "k4_kernel", RT=96, CT=128, BK=64, NST=8, NBUF=5, n_rt=15, n_ct=16,
                    r_ws=WS_W1T, r_ld=D * 2, c_ws=WS_Z, c_ld=D * 2, epi_pre=pre_k4, epilogue=epi_k4, ln_phase=merge)
def gen_k5(a):
    return gen_gemm(a, "k5_kernel", RT=64, CT=64, BK=128, NST=11, NBUF=4, n_rt=8, n_ct=32,
                    r_ws=WS_W2T, r_ld=FP * 2, c_ws=WS_HH, c_ld=F * 2,
                    epi_pre=pre_k5, epilogue=epi_k5, last_c_limit=12)
```

```python
from asmlib import Asm
from gen import *

def layernormN(a, NT, V, S, sEps, sInvD):
    R = range(NT)
    sm = [S + i for i in R]; tm = [S + NT + i for i in R]; q = [S + 2 * NT + i for i in R]
    rr = [S + 3 * NT + i for i in R]; sd = [S + 4 * NT + i for i in R]; T = S + 5 * NT
    for k in R:
        b = V + 8 * k
        a(f"v_add_f32 v{sm[k]}, v{b}, v{b+1}\nv_add_f32 v{tm[k]}, v{b+2}, v{b+3}\nv_add_f32 v{q[k]}, v{b+4}, v{b+5}\nv_add_f32 v{rr[k]}, v{b+6}, v{b+7}")
    for k in R:
        a(f"v_add_f32 v{sm[k]}, v{sm[k]}, v{tm[k]}\nv_add_f32 v{q[k]}, v{q[k]}, v{rr[k]}")
    for k in R:
        a(f"v_add_f32 v{sm[k]}, v{sm[k]}, v{q[k]}")
    allreduce(a, sm, tm)
    for k in R:
        a(f"v_mul_f32 v{sm[k]}, s{sInvD}, v{sm[k]}")
    chains = []
    for k in R:
        b = V + 8 * k
        for half in range(2):
            t = tm[k] if half == 0 else rr[k]; acc = q[k] if half == 0 else sd[k]
            ch = []
            for c in range(4):
                ch.append(f"v_sub_f32 v{t}, v{b+4*half+c}, v{sm[k]}")
                ch.append(f"v_mul_f32 v{acc}, v{t}, v{t}" if c == 0 else f"v_fmac_f32 v{acc}, v{t}, v{t}")
            chains.append(ch)
    interleave(a, chains)
    for k in R:
        a(f"v_add_f32 v{q[k]}, v{q[k]}, v{sd[k]}")
    allreduce(a, q, tm)
    for k in R:
        a(f"v_mul_f32 v{q[k]}, s{sInvD}, v{q[k]}")
    interleave(a, [bf16r_pair_l(sm[k], q[k], tm[k]) for k in R])
    for k in R:
        a(f"v_add_f32 v{q[k]}, s{sEps}, v{q[k]}")
    interleave(a, [bf16r_pair_l(q[k], q[k + 1], tm[k]) for k in range(0, NT, 2)])
    for k in R: a(f"v_sqrt_f32 v{sd[k]}, v{q[k]}")
    for k in R: a(f"v_rcp_f32 v{rr[k]}, v{sd[k]}")
    for k in R: a(f"v_fma_f32 v{tm[k]}, -v{sd[k]}, v{sd[k]}, v{q[k]}")
    for k in R: a(f"v_mul_f32 v{rr[k]}, 0.5, v{rr[k]}")
    for k in R: a(f"v_fma_f32 v{sd[k]}, v{tm[k]}, v{rr[k]}, v{sd[k]}")
    interleave(a, [bf16r_pair_l(sd[k], sd[k + 1], tm[k]) for k in range(0, NT, 2)])
    for k in R: a(f"v_rcp_f32 v{rr[k]}, v{sd[k]}")
    for k in R: a(f"v_fma_f32 v{tm[k]}, -v{sd[k]}, v{rr[k]}, 1.0")
    for k in R: a(f"v_fma_f32 v{rr[k]}, v{tm[k]}, v{rr[k]}, v{rr[k]}")
    chains = []
    for k in R:
        b = V + 8 * k
        for half in range(2):
            t0, t1 = T + 4 * k + 2 * half, T + 4 * k + 2 * half + 1
            ch = []
            for c in range(4 * half, 4 * half + 4, 2):
                x, y = b + c, b + c + 1
                ch += [f"v_sub_f32 v{x}, v{x}, v{sm[k]}", f"v_sub_f32 v{y}, v{y}, v{sm[k]}"]
                ch += bf16r_pair_l(x, y, t0)
                ch += [f"v_mul_f32 v{t0}, v{x}, v{rr[k]}", f"v_mul_f32 v{t1}, v{y}, v{rr[k]}",
                       f"v_fma_f32 v{x}, -v{t0}, v{sd[k]}, v{x}", f"v_fma_f32 v{y}, -v{t1}, v{sd[k]}, v{y}",
                       f"v_fma_f32 v{x}, v{x}, v{rr[k]}, v{t0}", f"v_fma_f32 v{y}, v{y}, v{rr[k]}, v{t1}"]
                ch += bf16r_pair_l(x, y, t0)
            chains.append(ch)
    interleave(a, chains)

K1_LDS = 18432
def gen_k1(a):
    kernel_header(a, "k1_kernel")
    a.rt_start()
    a("""
    s_cmp_ge_u32 s2, 304
    s_cbranch_scc1 K1_END
    s_cmp_ge_u32 s2, 128
    s_cbranch_scc1 K1_TR
    s_load_dwordx2 s[4:5], s[0:1], 0
    s_load_dwordx2 s[14:15], s[0:1], 112
    s_mov_b32 s50, 0x3727c5ac
    s_mov_b32 s51, 0x3b000000
    v_and_b32 v1, 63, v0
    v_lshrrev_b32 v2, 6, v0
    s_lshl_b32 s6, s2, 14
    v_lshlrev_b32 v3, 11, v2
    v_lshl_add_u32 v3, v1, 4, v3
    v_add_u32 v3, s6, v3
    s_waitcnt lgkmcnt(0)
    """)
    srd(a, 16, 4, 5, L * D * 2)
    for k in range(2):
        a(f"buffer_load_dwordx4 v[{16+4*k}:{19+4*k}], v3, s[16:19], 0 offen offset:{1024*k}")
    srd(a, 20, 14, 15, L * D * 2, WS_UT)
    a("""
    v_mul_u32_u24 v4, 264, v1
    v_lshl_add_u32 v4, v2, 2, v4
    v_lshrrev_b32 v5, 1, v0
    v_lshlrev_b32 v6, 5, v5
    v_lshrrev_b32 v5, 3, v5
    v_lshl_add_u32 v6, v5, 3, v6
    v_and_b32 v5, 1, v0
    v_lshl_add_u32 v6, v5, 4, v6
    v_lshlrev_b32 v7, 4, v0
    v_add_u32 v7, s6, v7
    v_add_u32 v8, 8192, v7
    s_waitcnt vmcnt(0)
    """)
    for k in range(2):
        for e in range(4):
            a(f"v_lshlrev_b32 v{32+8*k+2*e}, 16, v{16+4*k+e}")
            a(f"v_and_b32 v{33+8*k+2*e}, 0xffff0000, v{16+4*k+e}")
    layernormN(a, 2, 32, 48, 50, 51)
    for c in range(8):
        a(f"v_cvt_pk_bf16_f32 v{16+c}, v{32+c}, v{40+c}")
    for c in range(8):
        a(f"ds_write_b32 v4, v{16+c} offset:{32*c}")
    a("s_waitcnt lgkmcnt(0)\ns_barrier")
    for i in range(2):
        a(f"ds_read_b64 v[{16+4*i}:{17+4*i}], v6 offset:{8448*i}")
        a(f"ds_read_b64 v[{18+4*i}:{19+4*i}], v6 offset:{8448*i+8}")
    a("""
    s_waitcnt lgkmcnt(0)
    buffer_store_dwordx4 v[16:19], v7, s[20:23], 0 offen
    buffer_store_dwordx4 v[20:23], v8, s[20:23], 0 offen
    """)
    a.rt_end(0)
    a("s_endpgm")
    gen_tr(a)
    a.label("K1_END")
    a("s_endpgm")
    return kd("k1_kernel", 72)

K3_LDS = 17408
def gen_k3(a):
    kernel_header(a, "k3_kernel")
    a.rt_start()
    a("""
    s_cmp_ge_u32 s2, 128
    s_cbranch_scc1 K3_END
    s_load_dwordx2 s[4:5], s[0:1], 0
    s_load_dwordx2 s[14:15], s[0:1], 112
    s_mov_b32 s50, 0x3727c5ac
    s_mov_b32 s51, 0x3b000000
    v_and_b32 v1, 63, v0
    v_lshrrev_b32 v2, 6, v0
    s_lshl_b32 s6, s2, 14
    v_lshlrev_b32 v3, 11, v2
    v_lshl_add_u32 v3, v1, 4, v3
    v_add_u32 v3, s6, v3
    v_lshlrev_b32 v7, 4, v0
    v_add_u32 v7, s6, v7
    v_add_u32 v8, 8192, v7
    s_waitcnt lgkmcnt(0)
    """)
    srd(a, 20, 14, 15, L * D * 2, WS_T3)
    a("""
    buffer_load_dwordx4 v[72:75], v7, s[20:23], 0 offen
    buffer_load_dwordx4 v[76:79], v8, s[20:23], 0 offen
    """)
    srd(a, 16, 4, 5, L * D * 2)
    for k in range(2):
        a(f"buffer_load_dwordx4 v[{16+4*k}:{19+4*k}], v3, s[16:19], 0 offen offset:{1024*k}")
    srd(a, 24, 14, 15, L * D * 2, WS_H); srd(a, 28, 14, 15, L * D * 2, WS_Z)
    a("""
    v_lshrrev_b32 v5, 1, v0
    v_lshlrev_b32 v6, 5, v5
    v_lshrrev_b32 v5, 3, v5
    v_lshl_add_u32 v6, v5, 3, v6
    v_and_b32 v5, 1, v0
    v_lshl_add_u32 v6, v5, 4, v6
    v_mul_u32_u24 v4, 264, v1
    v_lshl_add_u32 v4, v2, 2, v4
    s_waitcnt vmcnt(2)
    """)
    for i in range(2):
        a(f"ds_write_b64 v6, v[{72+4*i}:{73+4*i}] offset:{8448*i}")
        a(f"ds_write_b64 v6, v[{74+4*i}:{75+4*i}] offset:{8448*i+8}")
    a("s_waitcnt lgkmcnt(0)\ns_barrier")
    for c in range(8):
        a(f"ds_read_b32 v{72+c}, v4 offset:{32*c}")
    a("s_waitcnt vmcnt(0) lgkmcnt(0)")
    for k in range(2):
        for e in range(4):
            a(f"v_lshlrev_b32 v{32+8*k+2*e}, 16, v{16+4*k+e}")
            a(f"v_and_b32 v{33+8*k+2*e}, 0xffff0000, v{16+4*k+e}")
    for c in range(8):
        a(f"v_lshlrev_b32 v{48+c}, 16, v{72+c}\nv_and_b32 v{56+c}, 0xffff0000, v{72+c}")
    for c in range(8):
        a(f"v_add_f32 v{32+c}, v{32+c}, v{48+c}\nv_add_f32 v{40+c}, v{40+c}, v{56+c}")
    for k in range(2):
        for e in range(4):
            a(f"v_cvt_pk_bf16_f32 v{16+4*k+e}, v{32+8*k+2*e}, v{33+8*k+2*e}")
    for k in range(2):
        for e in range(4):
            a(f"v_lshlrev_b32 v{32+8*k+2*e}, 16, v{16+4*k+e}")
            a(f"v_and_b32 v{33+8*k+2*e}, 0xffff0000, v{16+4*k+e}")
    for k in range(2):
        a(f"buffer_store_dwordx4 v[{16+4*k}:{19+4*k}], v3, s[24:27], 0 offen offset:{1024*k}")
    layernormN(a, 2, 32, 48, 50, 51)
    layernormN(a, 2, 32, 48, 50, 51)
    for k in range(2):
        for e in range(4):
            a(f"v_cvt_pk_bf16_f32 v{72+4*k+e}, v{32+8*k+2*e}, v{33+8*k+2*e}")
    for k in range(2):
        a(f"buffer_store_dwordx4 v[{72+4*k}:{75+4*k}], v3, s[28:31], 0 offen offset:{1024*k}")
    a.rt_end(1)
    a.label("K3_END")
    a("s_endpgm")
    return kd("k3_kernel", 80)

U_OFF = 256; U_RS = 160; KC_OFF = 7936; KC_CS = 4288
K2_LDS = KC_OFF + 8 * KC_CS
RED_WS = 8704; RED_RS = 272
PARAM = KC_OFF; PART = KC_OFF + 2048; MAXS = 0
def gen_k2(a):
    import gen2
    kernel_header(a, "k2_kernel")
    a.rt_start()
    a("""
    s_cmp_ge_u32 s2, 992
    s_cbranch_scc1 K2_END
    s_cmp_ge_u32 s2, 640
    s_cbranch_scc1 K2_TR
    s_cmp_lt_u32 s2, 128
    s_cbranch_scc1 K2_LN
    s_sub_u32 s2, s2, 128
    s_load_dwordx4 s[4:7], s[0:1], 8
    s_load_dwordx4 s[8:11], s[0:1], 24
    s_load_dwordx4 s[36:39], s[0:1], 40
    s_load_dwordx4 s[12:15], s[0:1], 104
    s_mov_b32 s50, 0x%x
    s_mov_b32 s51, 0x%x
    s_mov_b32 s52, 0x%x
    s_mov_b32 s53, 0x%x
    v_and_b32 v1, 127, v0
    v_lshlrev_b32 v1, 1, v1
    s_lshl_b32 s3, s2, 8
    v_add_u32 v1, s3, v1
    s_lshl_b32 s3, s2, 1
    v_mov_b32 v7, s3
    v_lshrrev_b32 v150, 1, v0
    v_lshlrev_b32 v150, 14, v150
    v_and_b32 v3, 1, v0
    v_lshl_add_u32 v150, v3, 4, v150
    s_lshl_b32 s3, s2, 5
    v_add_u32 v150, s3, v150
    s_waitcnt lgkmcnt(0)
    """ % (L2E, L2E_LO, LN2, INV2PI))
    a.stamp(0)
    srd(a, 32, 36, 37, D * 2)
    a("buffer_load_ushort v6, v7, s[32:35], 0 offen")
    srd(a, 16, 4, 5, D * N * 2)
    a("buffer_load_ushort v2, v1, s[16:19], 0 offen")
    srd(a, 20, 6, 7, D * N * 2)
    a("buffer_load_ushort v3, v1, s[20:23], 0 offen")
    srd(a, 24, 8, 9, D * N * 2)
    a("buffer_load_ushort v4, v1, s[24:27], 0 offen")
    srd(a, 28, 10, 11, D * N * 2)
    a("buffer_load_ushort v5, v1, s[28:31], 0 offen")
    srd(a, 40, 14, 15, D * L * 2, WS_UT)
    srd(a, 32, 38, 39, D * 2)
    a("buffer_load_ushort v149, v7, s[32:35], 0 offen")
    srd(a, 44, 14, 15, D * L * 2, WS_T3)
    a("""
    v_mov_b32 v40, 0
    v_mov_b32 v41, 0
    v_mov_b32 v42, 0
    v_mov_b32 v43, 0
    v_lshlrev_b32 v151, 4, v0
    v_cmp_gt_u32 vcc, 166, v0
    s_and_saveexec_b64 s[48:49], vcc
    ds_write_b128 v151, v[40:43]
    s_mov_b64 exec, s[48:49]
    v_and_b32 v10, 15, v0
    v_bfe_u32 v11, v0, 4, 2
    v_lshrrev_b32 v12, 6, v0
    v_lshrrev_b32 v13, 3, v10
    v_and_b32 v14, 7, v10
    v_lshl_add_u32 v20, v13, 7, v14
    v_lshrrev_b32 v13, 2, v10
    v_and_b32 v14, 3, v10
    v_lshlrev_b32 v13, 7, v13
    v_lshl_add_u32 v13, v14, 1, v13
    v_add_u32 v13, 256, v13
    v_subrev_u32 v14, 8, v10
    v_lshrrev_b32 v15, 1, v14
    v_and_b32 v14, 1, v14
    v_lshlrev_b32 v15, 7, v15
    v_lshl_add_u32 v15, v14, 2, v15
    v_add_u32 v15, 512, v15
    v_cmp_gt_u32 vcc, 8, v10
    v_cndmask_b32 v21, v15, v13, vcc
    v_lshlrev_b32 v13, 7, v10
    v_add_u32 v13, 1024, v13
    v_cmp_gt_u32 vcc, 9, v10
    v_cndmask_b32 v22, 0, v13, vcc
    v_lshlrev_b32 v23, 3, v10
    v_cvt_f32_u32 v20, v20
    v_cvt_f32_u32 v21, v21
    v_cvt_f32_u32 v22, v22
    v_cvt_f32_u32 v23, v23
    v_lshlrev_b32 v13, 3, v0
    v_sub_u32 v13, 2047, v13
    """)
    chains = []
    for e in range(8):
        t = 64 + 6 * e; m = 54 + 2 * e
        chains.append(f"""
        v_subrev_u32 v{t}, {e}, v13
        v_cvt_f32_u32 v{t}, v{t}
        v_cvt_pk_bf16_f32 v{t}, v{t}, v{t}
        v_lshlrev_b32 v{t}, 16, v{t}
        v_cvt_u32_f32 v{t}, v{t}
        v_lshrrev_b32 v{t+1}, 7, v{t}
        v_and_b32 v{t+2}, 7, v{t}
        v_bfe_u32 v{t+3}, v{t}, 3, 4
        v_lshl_add_u32 v{t+4}, v{t+1}, 3, v{t+2}
        v_lshrrev_b32 v{t+5}, 1, v{t+2}
        v_lshl_add_u32 v{t+5}, v{t+1}, 2, v{t+5}
        v_add_u32 v{t+5}, 8, v{t+5}
        v_cmp_gt_u32 s[{m}:{m+1}], 2, v{t+1}
        v_cndmask_b32 v{t+4}, v{t+5}, v{t+4}, s[{m}:{m+1}]
        v_lshrrev_b32 v{t+5}, 2, v{t+2}
        v_lshl_add_u32 v{t+5}, v{t+1}, 1, v{t+5}
        v_add_u32 v{t+5}, 16, v{t+5}
        v_cmp_gt_u32 s[{m}:{m+1}], 4, v{t+1}
        v_cndmask_b32 v{t+4}, v{t+5}, v{t+4}, s[{m}:{m+1}]
        v_add_u32 v{t+5}, 24, v{t+1}
        v_cmp_gt_u32 s[{m}:{m+1}], 8, v{t+1}
        v_cndmask_b32 v{t+4}, v{t+5}, v{t+4}, s[{m}:{m+1}]
        v_lshl_add_u32 v{t+4}, v{t+4}, 4, v{t+3}
        v_lshlrev_b32 v{112+e}, 2, v{t+4}
        """.split("\n"))
    interleave(a, chains)
    a("""
    s_waitcnt vmcnt(1)
    v_lshlrev_b32 v2, 16, v2
    v_lshlrev_b32 v3, 16, v3
    v_lshlrev_b32 v4, 16, v4
    v_lshlrev_b32 v5, 16, v5
    v_lshlrev_b32 v6, 16, v6
    """)
    a.stamp(1)
    exp_acc(a, 8, 6, 13, 14, 50, 51, 52)
    exp_acc(a, 9, 2, 15, 16, 50, 51, 52)
    bf16r_pair(a, 8, 9, 13)
    a(f"""
    v_mul_f32 v24, -v9, v8
    v_mul_f32 v25, v3, v8
    v_mul_f32 v26, v4, v8
    v_mul_f32 v27, v5, v8
    v_mul_f32 v24, s50, v24
    v_mul_f32 v25, s53, v25
    v_add_f32 v26, v26, v26
    v_add_f32 v27, v27, v27
    v_and_b32 v13, 127, v0
    v_lshlrev_b32 v13, 4, v13
    ds_write_b128 v13, v[24:27] offset:{PARAM}
    s_waitcnt lgkmcnt(0)
    s_barrier
    v_lshlrev_b32 v13, 5, v12
    v_add_u32 v13, v13, v11
    v_lshlrev_b32 v13, 4, v13
    """)
    for qq in range(8):
        a(f"ds_read_b128 v[{64+4*qq}:{67+4*qq}], v13 offset:{PARAM + 64*qq}")
    for r in range(12):
        a(f"v_mov_b32 v{100+r}, 0")
    a("s_waitcnt lgkmcnt(0)")
    def cexp_l(p, er, fi, o_r, o_i, t):
        return [f"v_mul_f32 v{t}, v{er}, v{p}", f"v_mul_f32 v{t+1}, v{fi}, v{p}", f"v_exp_f32 v{t}, v{t}",
                f"v_fract_f32 v{t+1}, v{t+1}", f"v_cos_f32 v{o_r}, v{t+1}", f"v_sin_f32 v{o_i}, v{t+1}",
                f"v_mul_f32 v{o_r}, v{t}, v{o_r}", f"v_mul_f32 v{o_i}, v{t}, v{o_i}"]
    for qq in range(8):
        er, fi, cr, ci = 64 + 4 * qq, 65 + 4 * qq, 66 + 4 * qq, 67 + 4 * qq
        par = qq & 1
        yb = 28 + 2 * par
        chains = [cexp_l(23, er, fi, yb, yb + 1, 32)]
        xbs = []
        for tl in range(3):
            t = 34 + 4 * tl; e_r, e_i = t + 2, t + 3
            xb = 46 + 6 * par + 2 * tl
            xbs.append(xb)
            chains.append(cexp_l(20 + tl, er, fi, e_r, e_i, t) + [
                f"v_mul_f32 v{xb}, v{cr}, v{e_r}", f"v_mul_f32 v{xb+1}, -v{cr}, v{e_i}",
                f"v_fma_f32 v{xb}, -v{ci}, v{e_i}, v{xb}", f"v_fma_f32 v{xb+1}, -v{ci}, v{e_r}, v{xb+1}"])
        interleave(a, chains)
        for h in range(2):
            for tl in range(3):
                a(f"v_mfma_f32_16x16x4_f32 v[{100+4*tl}:{103+4*tl}], v{xbs[tl]+h}, v{yb+h}, v[{100+4*tl}:{103+4*tl}]")
    a.stamp(2)
    a("""
    v_mul_u32_u24 v13, 3072, v12
    v_lshl_add_u32 v13, v11, 8, v13
    v_lshl_add_u32 v13, v10, 2, v13
    """)
    for tl in range(3):
        for r in range(4):
            a(f"ds_write_b32 v13, v{100+4*tl+r} offset:{PART + tl*1024 + r*64}")
    a("v_and_b32 v7, 7, v0")
    a("s_waitcnt lgkmcnt(0)\ns_barrier")
    for e in range(8):
        for w in range(4):
            a(f"ds_read_b32 v{72+4*e+w}, v{112+e} offset:{PART + 3072*w}")
    a("s_waitcnt lgkmcnt(0)")
    for e in range(8):
        b = 72 + 4 * e
        a(f"v_add_f32 v{b}, v{b}, v{b+1}\nv_add_f32 v{b+2}, v{b+2}, v{b+3}")
    for e in range(8):
        b = 72 + 4 * e
        a(f"v_add_f32 v{64+e}, v{b}, v{b+2}")
    a("""
    v_max3_f32 v14, abs(v64), abs(v65), abs(v66)
    v_max3_f32 v15, abs(v67), abs(v68), abs(v69)
    v_max3_f32 v14, abs(v70), abs(v71), v14
    v_max_f32 v14, v14, v15
    """)
    allreduce(a, [14], [15], op="v_max_f32")
    a(f"""
    v_lshlrev_b32 v16, 2, v12
    ds_write_b32 v16, v14 offset:{MAXS}
    s_waitcnt lgkmcnt(0)
    s_barrier
    v_mov_b32 v16, 0
    ds_read_b128 v[16:19], v16 offset:{MAXS}
    s_waitcnt lgkmcnt(0)
    v_max3_f32 v14, v16, v17, v18
    v_max_f32 v14, v14, v19
    v_frexp_exp_i32_f32 v15, v14
    v_mov_b32 v16, -100
    v_mov_b32 v17, 100
    v_med3_i32 v15, v15, v16, v17
    v_sub_u32 v16, 15, v15
    """)
    for e in range(8): a(f"v_ldexp_f32 v{64+e}, v{64+e}, v16")
    for e in range(8): a(f"v_cvt_f16_f32 v{64+e}, v{64+e}")
    for e in range(4): a(f"v_pack_b32_f16 v{16+e}, v{64+2*e}, v{65+2*e}")
    a(f"""
    v_subrev_u32 v15, 15, v15
    v_ldexp_f32 v148, 1.0, v15
    ds_write_b128 v151, v[16:19] offset:{KC_OFF}
    v_mov_b32 v40, 0
    v_mov_b32 v41, 0
    v_mov_b32 v42, 0
    v_mov_b32 v43, 0
    v_lshrrev_b32 v6, 3, v0
    v_mul_u32_u24 v6, {KC_CS}, v6
    v_lshl_add_u32 v6, v7, 4, v6
    v_cmp_gt_u32 vcc, 64, v0
    s_and_saveexec_b64 s[48:49], vcc
    ds_write_b128 v6, v[40:43] offset:{KC_OFF + 4096}
    s_mov_b64 exec, s[48:49]
    """)
    a("""
    v_readfirstlane_b32 s58, v12
    s_cmp_lg_u32 s58, 0
    s_cbranch_scc1 K2_NOPOLL
    """)
    srd(a, 60, 12, 13, 256)
    a("v_mov_b32 v58, 0")
    a.label("K2_POLL")
    a("""
    buffer_load_dword v59, v58, s[60:63], 0 offen sc1
    s_waitcnt vmcnt(0)
    v_readfirstlane_b32 s58, v59
    s_cmp_ge_u32 s58, 128
    s_cbranch_scc1 K2_POLLED
    s_sleep 16
    """)
    a.branch_back("s_branch", "K2_POLL")
    a.label("K2_POLLED")
    a.label("K2_NOPOLL")
    a(f"""
    s_waitcnt lgkmcnt(0)
    s_barrier
    buffer_load_dwordx4 v[144:147], v150, s[40:43], 0 offen sc1
    ds_read_b128 v[20:23], v151 offset:{KC_OFF + 16}
    v_mov_b32 v8, v10
    v_mov_b32 v9, v11
    v_mov_b32 v10, v12
    v_readfirstlane_b32 s42, v12
    s_waitcnt lgkmcnt(0)
    """)
    a.stamp(3)
    for k in range(7):
        a(f"v_alignbit_b32 v{32+k}, v{17+k}, v{16+k}, 16")
    for j in range(4):
        a(f"v_mov_b32 v{48+j}, v{17+j}\nv_mov_b32 v{52+j}, v{19+j}\nv_mov_b32 v{56+j}, v{33+j}\nv_mov_b32 v{60+j}, v{35+j}")
    srcs = {1: 32, 2: 48, 3: 56, 4: 18, 5: 34, 6: 52, 7: 60}
    for c in range(1, 8):
        a(f"ds_write_b128 v151, v[{srcs[c]}:{srcs[c]+3}] offset:{KC_OFF + c*KC_CS}")
    a("""
    s_mul_i32 s43, s42, 6
    s_cmp_eq_u32 s42, 3
    s_cselect_b32 s56, 2, 0
    s_add_u32 s43, s43, s56
    s_cmp_lt_u32 s42, 2
    s_cselect_b32 s54, 3, 2
    s_cmp_eq_u32 s42, 3
    s_cselect_b32 s54, 0, s54
    s_cmp_lt_u32 s42, 2
    s_cselect_b32 s55, 0, 2
    s_cmp_eq_u32 s42, 3
    s_cselect_b32 s55, 6, s55
    """)
    a(f"""
    v_and_b32 v13, 7, v8
    v_sub_u32 v13, 7, v13
    v_mul_u32_u24 v11, {KC_CS}, v13
    v_lshrrev_b32 v13, 3, v8
    v_sub_u32 v13, v9, v13
    v_lshl_add_u32 v11, v13, 4, v11
    s_lshl_b32 s57, s43, 7
    s_sub_u32 s57, {KC_OFF + 4080 - 96}, s57
    v_add_u32 v11, s57, v11
    v_mul_u32_u24 v12, {U_RS}, v8
    v_lshl_add_u32 v12, v9, 4, v12
    s_mul_i32 s57, s43, {U_RS}
    s_sub_u32 s57, {U_OFF + 15*U_RS}, s57
    v_add_u32 v12, s57, v12
    """)
    for r in range(32):
        a(f"v_mov_b32 v{112+r}, 0")
    a("s_waitcnt vmcnt(0)")
    for j in range(4):
        a(f"""
        v_lshlrev_b32 v58, 16, v{144+j}
        v_and_b32 v59, 0xffff0000, v{144+j}
        v_cvt_pkrtz_f16_f32 v{64+j}, v58, v59
        """)
    a(f"""
    v_lshrrev_b32 v58, 3, v0
    v_mul_u32_u24 v58, {U_RS}, v58
    v_lshl_add_u32 v58, v7, 4, v58
    ds_write_b128 v58, v[64:67] offset:{U_OFF + 15*U_RS}
    """)
    a("s_waitcnt lgkmcnt(0)\ns_barrier")
    a.stamp(4)
    SET = [dict(F=48, G=64), dict(F=80, G=96)]
    def Fr(s, al): b = SET[s]["F"] + 4 * al; return f"v[{b}:{b+3}]"
    def Gr(s, c, be): b = SET[s]["G"] + 8 * c + 4 * be; return f"v[{b}:{b+3}]"
    def acc(c, al): b = 112 + 16 * c + 4 * al; return f"v[{b}:{b+3}]"
    def loads(s, cs):
        for al in range(4):
            a(f"ds_read_b128 {Fr(s, al)}, v11 offset:{96 - 32*al}")
        for c in cs:
            for be in range(2):
                a(f"ds_read_b128 {Gr(s, c, be)}, v12 offset:{2560*c + 64*be}")
    def mf(c, al, fa, gb):
        a(f"v_mfma_f32_16x16x32_f16 {acc(c, al)}, {fa}, {gb}, {acc(c, al)}")
    def iteration(s, cs):
        o = 1 - s
        a("s_waitcnt lgkmcnt(0)")
        for c in cs:
            mf(c, 0, Fr(o, 2), Gr(s, c, 1))
            mf(c, 1, Fr(o, 3), Gr(s, c, 1))
        a(f"v_subrev_u32 v11, 128, v11\nv_subrev_u32 v12, {U_RS}, v12")
        loads(o, cs)
        for c in cs:
            for al in range(4):
                mf(c, al, Fr(s, al), Gr(s, c, 0))
        for c in cs:
            mf(c, 2, Fr(s, 0), Gr(s, c, 1))
            mf(c, 3, Fr(s, 1), Gr(s, c, 1))
    a(f"ds_read_b128 {Fr(1, 2)}, v11 offset:160")
    a(f"ds_read_b128 {Fr(1, 3)}, v11 offset:128")
    loads(0, [0, 1])
    a("s_cmp_eq_u32 s54, 0\ns_cbranch_scc1 K2_L1PRE")
    a.label("K2_L2")
    iteration(0, [0, 1]); iteration(1, [0, 1])
    a("s_sub_u32 s54, s54, 1\ns_cmp_lg_u32 s54, 0")
    a.branch_back("s_cbranch_scc1", "K2_L2")
    a.label("K2_L1PRE")
    a("s_cmp_eq_u32 s55, 0\ns_cbranch_scc1 K2_RED")
    a.label("K2_L1")
    iteration(0, [1]); iteration(1, [1])
    a("s_sub_u32 s55, s55, 1\ns_cmp_lg_u32 s55, 0")
    a.branch_back("s_cbranch_scc1", "K2_L1")
    a.label("K2_RED", fence=False)
    a("s_waitcnt lgkmcnt(0)")
    a.fence(12)
    a.stamp(5)
    a(f"""
    s_barrier
    v_mul_u32_u24 v13, {RED_WS}, v10
    v_mul_u32_u24 v14, {RED_RS}, v8
    v_add_u32 v13, v13, v14
    v_lshl_add_u32 v13, v9, 4, v13
    """)
    for c in range(2):
        for al in range(4):
            a(f"ds_write_b128 v13, {acc(c, al)} offset:{16*c*RED_RS + 64*al}")
    a(f"""
    s_waitcnt lgkmcnt(0)
    s_barrier
    v_lshrrev_b32 v13, 3, v0
    v_mul_u32_u24 v13, {RED_RS}, v13
    v_lshl_add_u32 v13, v7, 5, v13
    """)
    for w in range(4):
        a(f"ds_read_b128 v[{48+8*w}:{51+8*w}], v13 offset:{RED_WS*w}")
        a(f"ds_read_b128 v[{52+8*w}:{55+8*w}], v13 offset:{RED_WS*w+16}")
    a("v_lshlrev_b32 v149, 16, v149\ns_waitcnt lgkmcnt(0)")
    for e in range(8):
        a(f"v_add_f32 v{48+e}, v{48+e}, v{56+e}\nv_add_f32 v{64+e}, v{64+e}, v{72+e}")
    for e in range(8):
        a(f"v_add_f32 v{48+e}, v{48+e}, v{64+e}")
    for e in range(8):
        a(f"v_mul_f32 v{48+e}, v{48+e}, v148")
    chains = []
    for j in range(4):
        x, y = 48 + 2 * j, 49 + 2 * j
        t = 64 + 4 * j
        ch = bf16r_pair_l(x, y, t)
        ch += [f"v_lshlrev_b32 v{t+1}, 16, v{144+j}", f"v_and_b32 v{t+2}, 0xffff0000, v{144+j}",
               f"v_mul_f32 v{t+1}, v{t+1}, v149", f"v_mul_f32 v{t+2}, v{t+2}, v149"]
        ch += bf16r_pair_l(t + 1, t + 2, t)
        ch += [f"v_add_f32 v{x}, v{x}, v{t+1}", f"v_add_f32 v{y}, v{y}, v{t+2}", f"v_cvt_pk_bf16_f32 v{56+j}, v{x}, v{y}"]
        chains.append(ch)
    interleave(a, chains)
    a("buffer_store_dwordx4 v[56:59], v150, s[44:47], 0 offen")
    a.stamp(6)
    a.dump_stamps(7, 100, 2)
    a.rt_end(0)
    a("s_endpgm")
    gen_ln1_256(a)
    gen2.gen_k2_tr(a)
    return kd("k2_kernel", 152)


def gen_tr(a):
    a.label("K1_TR")
    a.hist = []
    a("""
    s_load_dwordx2 s[4:5], s[0:1], 64
    s_load_dwordx2 s[6:7], s[0:1], 80
    s_load_dwordx2 s[14:15], s[0:1], 112
    s_sub_u32 s3, s2, 128
    v_lshrrev_b32 v30, 8, v0
    v_and_b32 v0, 255, v0
    s_waitcnt lgkmcnt(0)
    s_cmp_ge_u32 s3, 88
    s_cbranch_scc1 K1_TR2
    """)
    srd(a, 16, 4, 5, D * F * 2); srd(a, 20, 14, 15, F * D * 2, WS_W1T)
    a("""
    s_lshl_b32 s3, s3, 1
    v_add_u32 v31, s3, v30
    v_and_b32 v32, 7, v31
    v_lshrrev_b32 v33, 3, v31
    s_mov_b32 s42, %d
    s_mov_b32 s43, %d
    s_branch K1_TRC
    """ % (F * 2, D * 2))
    a.label("K1_TR2")
    srd(a, 16, 6, 7, F * D * 2); srd(a, 20, 14, 15, D * FP * 2, WS_W2T)
    a("""
    s_sub_u32 s3, s3, 88
    s_lshl_b32 s3, s3, 1
    v_add_u32 v31, s3, v30
    v_and_b32 v33, 7, v31
    v_lshrrev_b32 v32, 3, v31
    s_mov_b32 s42, %d
    s_mov_b32 s43, %d
    """ % (D * 2, FP * 2))
    a.label("K1_TRC")
    a("""
    v_lshrrev_b32 v1, 3, v0
    v_and_b32 v2, 7, v0
    v_lshl_add_u32 v3, v32, 6, v1
    v_mul_lo_u32 v3, v3, s42
    v_lshl_add_u32 v3, v2, 4, v3
    v_lshl_add_u32 v3, v33, 7, v3
    s_lshl_b32 s46, s42, 5
    v_add_u32 v4, s46, v3
    buffer_load_dwordx4 v[8:11], v3, s[16:19], 0 offen
    buffer_load_dwordx4 v[12:15], v4, s[16:19], 0 offen
    v_mul_u32_u24 v34, 9216, v30
    v_mul_u32_u24 v5, 144, v1
    v_lshl_add_u32 v5, v2, 4, v5
    v_add_u32 v5, v5, v34
    v_lshrrev_b32 v6, 2, v0
    v_and_b32 v7, 3, v0
    v_mul_u32_u24 v16, 2304, v7
    v_lshl_add_u32 v16, v6, 1, v16
    v_add_u32 v16, v16, v34
    v_lshl_add_u32 v17, v33, 6, v6
    v_mul_lo_u32 v17, v17, s43
    v_lshl_add_u32 v17, v7, 5, v17
    v_lshl_add_u32 v17, v32, 7, v17
    s_waitcnt vmcnt(0)
    ds_write_b128 v5, v[8:11]
    ds_write_b128 v5, v[12:15] offset:4608
    s_waitcnt lgkmcnt(0)
    s_barrier
    """)
    for e in range(16):
        a(f"ds_read_u16 v{36 + e}, v16 offset:{144*e}")
    a("s_waitcnt lgkmcnt(0)")
    for e in range(8):
        a(f"v_lshl_or_b32 v{20+e}, v{37+2*e}, 16, v{36+2*e}")
    a("""
    buffer_store_dwordx4 v[20:23], v17, s[20:23], 0 offen
    buffer_store_dwordx4 v[24:27], v17, s[20:23], 0 offen offset:16
    """)
    a.rt_end(0)


def gen_ln1_256(a):
    a.label("K2_LN")
    a.hist = []
    a("""
    s_setprio 3
    s_load_dwordx2 s[4:5], s[0:1], 0
    s_load_dwordx4 s[12:15], s[0:1], 104
    s_mov_b32 s50, 0x3727c5ac
    s_mov_b32 s51, 0x3b000000
    v_and_b32 v1, 63, v0
    v_lshrrev_b32 v2, 6, v0
    s_lshl_b32 s6, s2, 14
    v_lshlrev_b32 v3, 12, v2
    v_lshl_add_u32 v3, v1, 4, v3
    v_add_u32 v3, s6, v3
    s_waitcnt lgkmcnt(0)
    """)
    srd(a, 16, 4, 5, L * D * 2)
    for k in range(4):
        a(f"buffer_load_dwordx4 v[{16+4*k}:{19+4*k}], v3, s[16:19], 0 offen offset:{1024*k}")
    srd(a, 20, 14, 15, L * D * 2, WS_UT); srd(a, 24, 12, 13, 256)
    a("""
    v_mul_u32_u24 v4, 264, v1
    v_lshl_add_u32 v4, v2, 3, v4
    v_lshrrev_b32 v5, 1, v0
    v_lshlrev_b32 v6, 5, v5
    v_lshrrev_b32 v5, 3, v5
    v_lshl_add_u32 v6, v5, 3, v6
    v_and_b32 v5, 1, v0
    v_lshl_add_u32 v6, v5, 4, v6
    v_lshlrev_b32 v7, 4, v0
    v_add_u32 v7, s6, v7
    v_add_u32 v8, 4096, v7
    v_add_u32 v9, 8192, v7
    v_add_u32 v10, 12288, v7
    s_waitcnt vmcnt(0)
    """)
    for k in range(4):
        for e in range(4):
            a(f"v_lshlrev_b32 v{32+8*k+2*e}, 16, v{16+4*k+e}")
            a(f"v_and_b32 v{33+8*k+2*e}, 0xffff0000, v{16+4*k+e}")
    layernormN(a, 4, 32, 64, 50, 51)
    for c in range(8):
        a(f"v_cvt_pk_bf16_f32 v{16+2*c}, v{32+c}, v{40+c}")
        a(f"v_cvt_pk_bf16_f32 v{17+2*c}, v{48+c}, v{56+c}")
    for c in range(8):
        a(f"ds_write_b64 v4, v[{16+2*c}:{17+2*c}] offset:{32*c}")
    a("s_waitcnt lgkmcnt(0)\ns_barrier")
    for i in range(4):
        a(f"ds_read_b64 v[{16+4*i}:{17+4*i}], v6 offset:{4224*i}")
        a(f"ds_read_b64 v[{18+4*i}:{19+4*i}], v6 offset:{4224*i+8}")
    a("s_waitcnt lgkmcnt(0)")
    for i in range(4):
        a(f"buffer_store_dwordx4 v[{16+4*i}:{19+4*i}], v{7+i}, s[20:23], 0 offen sc1")
    a("""
    s_waitcnt vmcnt(0)
    s_barrier
    v_mov_b32 v11, 0
    v_mov_b32 v12, 1
    v_cmp_eq_u32 vcc, 0, v0
    s_and_saveexec_b64 s[30:31], vcc
    buffer_atomic_add v12, v11, s[24:27], 0 offen sc1
    s_mov_b64 exec, s[30:31]
    """)
    a.rt_end(0)
    a("s_endpgm")
```

```python
import sys
sys.path.insert(0, "gen")
from asmlib import Asm

import os
SFLAG = os.environ.get('SFLAG', '')
L = 2048; D = 512; N = 128; F = 1376; FP = 1408
WS_UT = 0x000000; WS_R16 = 0x200000; WS_SCL = 0x400000; WS_T3 = 0x500000; WS_H = 0x700000
WS_Z = 0x900000; WS_W1T = 0xB00000; WS_W2T = 0xD00000; WS_HH = 0xF00000
L2E = 0x3fb8aa3b; L2E_LO = 0x32a57060; LN2 = 0x3f317218; INV2PI = 0x3e22f983

def srd(a, sd, lo, hi, nbytes, off=0):
    if off:
        a(f"s_add_u32 s{sd}, s{lo}, 0x{off:x}")
        a(f"s_addc_u32 s{sd+1}, s{hi}, 0")
    else:
        a(f"s_mov_b32 s{sd}, s{lo}")
        a(f"s_mov_b32 s{sd+1}, s{hi}")
    a(f"s_mov_b32 s{sd+2}, 0x{nbytes:x}")
    a(f"s_mov_b32 s{sd+3}, 0x00020000")

def allreduce(a, regs, tmps, op="v_add_f32"):
    for n in (8, 4, 2, 1):
        for r in regs:
            a(f"{op}_dpp v{r}, v{r}, v{r} row_ror:{n} row_mask:0xf bank_mask:0xf")
    for sw in ("v_permlane16_swap_b32", "v_permlane32_swap_b32"):
        for r, t in zip(regs, tmps):
            a(f"v_mov_b32 v{t}, v{r}")
        for r, t in zip(regs, tmps):
            a(f"{sw} v{r}, v{t}")
        for r, t in zip(regs, tmps):
            a(f"{op} v{r}, v{r}, v{t}")

def bf16r_pair(a, x, y, t):
    a(f"v_cvt_pk_bf16_f32 v{t}, v{x}, v{y}")
    a(f"v_lshlrev_b32 v{x}, 16, v{t}")
    a(f"v_and_b32 v{y}, 0xffff0000, v{t}")

def interleave(a, chains):
    chains = [[l.strip() for l in c if l.strip()] for c in chains]
    n = max(len(c) for c in chains)
    for i in range(n):
        for c in chains:
            if i < len(c): a(c[i])

def bf16r_pair_l(x, y, t):
    return [f"v_cvt_pk_bf16_f32 v{t}, v{x}, v{y}", f"v_lshlrev_b32 v{x}, 16, v{t}", f"v_and_b32 v{y}, 0xffff0000, v{t}"]

def layernorm4(a, V, S, sEps, sInvD):
    sm = [S + i for i in range(4)]; tm = [S + 4 + i for i in range(4)]
    q = [S + 8 + i for i in range(4)]; rr = [S + 12 + i for i in range(4)]
    sd = [S + 16 + i for i in range(4)]; T = S + 20
    for k in range(4):
        b = V + 8 * k
        a(f"v_add_f32 v{sm[k]}, v{b}, v{b+1}")
        a(f"v_add_f32 v{tm[k]}, v{b+2}, v{b+3}")
        a(f"v_add_f32 v{q[k]}, v{b+4}, v{b+5}")
        a(f"v_add_f32 v{rr[k]}, v{b+6}, v{b+7}")
    for k in range(4):
        a(f"v_add_f32 v{sm[k]}, v{sm[k]}, v{tm[k]}")
        a(f"v_add_f32 v{q[k]}, v{q[k]}, v{rr[k]}")
    for k in range(4):
        a(f"v_add_f32 v{sm[k]}, v{sm[k]}, v{q[k]}")
    allreduce(a, sm, tm)
    for k in range(4):
        a(f"v_mul_f32 v{sm[k]}, s{sInvD}, v{sm[k]}")
    chains = []
    for k in range(4):
        b = V + 8 * k
        ch = []
        for c in range(0, 8, 2):
            ch.append(f"v_sub_f32 v{tm[k]}, v{b+c}, v{sm[k]}")
            ch.append(f"v_sub_f32 v{rr[k]}, v{b+c+1}, v{sm[k]}")
            if c == 0:
                ch.append(f"v_mul_f32 v{q[k]}, v{tm[k]}, v{tm[k]}")
                ch.append(f"v_mul_f32 v{sd[k]}, v{rr[k]}, v{rr[k]}")
            else:
                ch.append(f"v_fmac_f32 v{q[k]}, v{tm[k]}, v{tm[k]}")
                ch.append(f"v_fmac_f32 v{sd[k]}, v{rr[k]}, v{rr[k]}")
        ch.append(f"v_add_f32 v{q[k]}, v{q[k]}, v{sd[k]}")
        chains.append(ch)
    interleave(a, chains)
    allreduce(a, q, tm)
    for k in range(4):
        a(f"v_mul_f32 v{q[k]}, s{sInvD}, v{q[k]}")
    interleave(a, [bf16r_pair_l(sm[k], q[k], tm[k]) for k in range(4)])
    for k in range(4):
        a(f"v_add_f32 v{q[k]}, s{sEps}, v{q[k]}")
    interleave(a, [bf16r_pair_l(q[0], q[1], tm[0]), bf16r_pair_l(q[2], q[3], tm[1])])
    for k in range(4):
        a(f"v_sqrt_f32 v{sd[k]}, v{q[k]}")
    for k in range(4):
        a(f"v_rcp_f32 v{rr[k]}, v{sd[k]}")
    for k in range(4):
        a(f"v_fma_f32 v{tm[k]}, -v{sd[k]}, v{sd[k]}, v{q[k]}")
    for k in range(4):
        a(f"v_mul_f32 v{rr[k]}, 0.5, v{rr[k]}")
    for k in range(4):
        a(f"v_fma_f32 v{sd[k]}, v{tm[k]}, v{rr[k]}, v{sd[k]}")
    interleave(a, [bf16r_pair_l(sd[0], sd[1], tm[0]), bf16r_pair_l(sd[2], sd[3], tm[1])])
    for k in range(4):
        a(f"v_rcp_f32 v{rr[k]}, v{sd[k]}")
    for k in range(4):
        a(f"v_fma_f32 v{tm[k]}, -v{sd[k]}, v{rr[k]}, 1.0")
    for k in range(4):
        a(f"v_fma_f32 v{rr[k]}, v{tm[k]}, v{rr[k]}, v{rr[k]}")
    chains = []
    for k in range(4):
        b = V + 8 * k
        t0, t1 = T + 3 * k, T + 3 * k + 1
        ch = []
        for c in range(0, 8, 2):
            x, y = b + c, b + c + 1
            ch += [f"v_sub_f32 v{x}, v{x}, v{sm[k]}", f"v_sub_f32 v{y}, v{y}, v{sm[k]}"]
            ch += bf16r_pair_l(x, y, t0)
            ch += [f"v_mul_f32 v{t0}, v{x}, v{rr[k]}", f"v_mul_f32 v{t1}, v{y}, v{rr[k]}",
                   f"v_fma_f32 v{x}, -v{t0}, v{sd[k]}, v{x}", f"v_fma_f32 v{y}, -v{t1}, v{sd[k]}, v{y}",
                   f"v_fma_f32 v{x}, v{x}, v{rr[k]}, v{t0}", f"v_fma_f32 v{y}, v{y}, v{rr[k]}, v{t1}"]
            ch += bf16r_pair_l(x, y, t0)
        chains.append(ch)
    interleave(a, chains)

def exp_acc(a, dst, x, t0, t1, sL2E, sL2ELO, sLN2):
    a(f"v_mul_f32 v{t0}, s{sL2E}, v{x}")
    a(f"v_fma_f32 v{t1}, v{x}, s{sL2E}, -v{t0}")
    a(f"v_fma_f32 v{t1}, v{x}, s{sL2ELO}, v{t1}")
    a(f"v_exp_f32 v{dst}, v{t0}")
    a(f"v_mul_f32 v{t1}, s{sLN2}, v{t1}")
    a(f"v_fma_f32 v{dst}, v{dst}, v{t1}, v{dst}")

def kernel_header(a, name):
    a.raw(f".globl {name}")
    a.raw(".p2align 8")
    a.raw(f".type {name},@function")
    a.raw(f"{name}:")
    a.hist = []

def kd(name, vgpr, sgpr=100):
    v = (vgpr + 7) // 8 * 8
    return f""".amdhsa_kernel {name}
  .amdhsa_next_free_vgpr {v}
  .amdhsa_next_free_sgpr {sgpr}
  .amdhsa_accum_offset {v}
  .amdhsa_group_segment_fixed_size 0
  .amdhsa_kernarg_size 120
  .amdhsa_user_sgpr_count 2
  .amdhsa_user_sgpr_kernarg_segment_ptr 1
  .amdhsa_system_sgpr_workgroup_id_x 1
  .amdhsa_float_denorm_mode_32 3
.end_amdhsa_kernel
"""

K1_LDS = 17408
def gen_k1(a):
    kernel_header(a, "k1_kernel")
    a.rt_start()
    a("s_cmp_ge_u32 s2, 640")
    a("s_cbranch_scc1 K1_END")
    a("s_cmp_lt_u32 s2, 128")
    a("s_cbranch_scc1 K1_LN")
    a.stamp(0)
    a("""
    s_sub_u32 s2, s2, 128
    s_load_dwordx4 s[4:7], s[0:1], 8
    s_load_dwordx4 s[8:11], s[0:1], 24
    s_load_dwordx2 s[12:13], s[0:1], 40
    s_load_dwordx2 s[14:15], s[0:1], 112
    s_mov_b32 s50, 0x%x
    s_mov_b32 s51, 0x%x
    s_mov_b32 s52, 0x%x
    s_mov_b32 s53, 0x%x
    v_and_b32 v1, 127, v0
    v_lshlrev_b32 v1, 1, v1
    s_lshl_b32 s3, s2, 8
    v_add_u32 v1, s3, v1
    s_lshl_b32 s3, s2, 1
    v_mov_b32 v7, s3
    s_waitcnt lgkmcnt(0)
    """ % (L2E, L2E_LO, LN2, INV2PI))
    srd(a, 16, 4, 5, D * N * 2); srd(a, 20, 6, 7, D * N * 2); srd(a, 24, 8, 9, D * N * 2); srd(a, 28, 10, 11, D * N * 2)
    srd(a, 32, 12, 13, D * 2)
    a("""
    buffer_load_ushort v6, v7, s[32:35], 0 offen
    buffer_load_ushort v2, v1, s[16:19], 0 offen
    buffer_load_ushort v3, v1, s[20:23], 0 offen
    buffer_load_ushort v4, v1, s[24:27], 0 offen
    buffer_load_ushort v5, v1, s[28:31], 0 offen
    """)
    srd(a, 36, 14, 15, D * L * 2, WS_R16); srd(a, 40, 14, 15, D * 4, WS_SCL)
    a("""
    v_and_b32 v10, 15, v0
    v_bfe_u32 v11, v0, 4, 2
    v_lshrrev_b32 v12, 6, v0
    """)
    a("""
    v_lshrrev_b32 v13, 3, v10
    v_and_b32 v14, 7, v10
    v_lshl_add_u32 v20, v13, 7, v14
    """)
    a("""
    v_lshrrev_b32 v13, 2, v10
    v_and_b32 v14, 3, v10
    v_lshlrev_b32 v13, 7, v13
    v_lshl_add_u32 v13, v14, 1, v13
    v_add_u32 v13, 256, v13
    v_subrev_u32 v14, 8, v10
    v_lshrrev_b32 v15, 1, v14
    v_and_b32 v14, 1, v14
    v_lshlrev_b32 v15, 7, v15
    v_lshl_add_u32 v15, v14, 2, v15
    v_add_u32 v15, 512, v15
    v_cmp_gt_u32 vcc, 8, v10
    v_cndmask_b32 v21, v15, v13, vcc
    """)
    a("""
    v_lshlrev_b32 v13, 7, v10
    v_add_u32 v13, 1024, v13
    v_cmp_gt_u32 vcc, 9, v10
    v_cndmask_b32 v22, 0, v13, vcc
    v_lshlrev_b32 v23, 3, v10
    v_cvt_f32_u32 v20, v20
    v_cvt_f32_u32 v21, v21
    v_cvt_f32_u32 v22, v22
    v_cvt_f32_u32 v23, v23
    """)
    a("v_lshlrev_b32 v13, 3, v0\nv_sub_u32 v13, 2047, v13")
    chains = []
    for e in range(8):
        t = 64 + 6 * e; m = 54 + 2 * e
        chains.append(f"""
        v_subrev_u32 v{t}, {e}, v13
        v_cvt_f32_u32 v{t}, v{t}
        v_cvt_pk_bf16_f32 v{t}, v{t}, v{t}
        v_lshlrev_b32 v{t}, 16, v{t}
        v_cvt_u32_f32 v{t}, v{t}
        v_lshrrev_b32 v{t+1}, 7, v{t}
        v_and_b32 v{t+2}, 7, v{t}
        v_bfe_u32 v{t+3}, v{t}, 3, 4
        v_lshl_add_u32 v{t+4}, v{t+1}, 3, v{t+2}
        v_lshrrev_b32 v{t+5}, 1, v{t+2}
        v_lshl_add_u32 v{t+5}, v{t+1}, 2, v{t+5}
        v_add_u32 v{t+5}, 8, v{t+5}
        v_cmp_gt_u32 s[{m}:{m+1}], 2, v{t+1}
        v_cndmask_b32 v{t+4}, v{t+5}, v{t+4}, s[{m}:{m+1}]
        v_lshrrev_b32 v{t+5}, 2, v{t+2}
        v_lshl_add_u32 v{t+5}, v{t+1}, 1, v{t+5}
        v_add_u32 v{t+5}, 16, v{t+5}
        v_cmp_gt_u32 s[{m}:{m+1}], 4, v{t+1}
        v_cndmask_b32 v{t+4}, v{t+5}, v{t+4}, s[{m}:{m+1}]
        v_add_u32 v{t+5}, 24, v{t+1}
        v_cmp_gt_u32 s[{m}:{m+1}], 8, v{t+1}
        v_cndmask_b32 v{t+4}, v{t+5}, v{t+4}, s[{m}:{m+1}]
        v_lshl_add_u32 v{t+4}, v{t+4}, 4, v{t+3}
        v_lshlrev_b32 v{112+e}, 2, v{t+4}
        """.split("\n"))
    interleave(a, chains)
    a("""
    s_waitcnt vmcnt(0)
    v_lshlrev_b32 v2, 16, v2
    v_lshlrev_b32 v3, 16, v3
    v_lshlrev_b32 v4, 16, v4
    v_lshlrev_b32 v5, 16, v5
    v_lshlrev_b32 v6, 16, v6
    """)
    a.stamp(1)
    exp_acc(a, 8, 6, 13, 14, 50, 51, 52)
    exp_acc(a, 9, 2, 15, 16, 50, 51, 52)
    bf16r_pair(a, 8, 9, 13)
    a("""
    v_mul_f32 v24, -v9, v8
    v_mul_f32 v25, v3, v8
    v_mul_f32 v26, v4, v8
    v_mul_f32 v27, v5, v8
    v_mul_f32 v24, s50, v24
    v_mul_f32 v25, s53, v25
    v_add_f32 v26, v26, v26
    v_add_f32 v27, v27, v27
    v_and_b32 v13, 127, v0
    v_lshlrev_b32 v13, 4, v13
    ds_write_b128 v13, v[24:27]
    s_waitcnt lgkmcnt(0)
    s_barrier
    """)
    a.stamp(2)
    a("""
    v_lshlrev_b32 v13, 5, v12
    v_add_u32 v13, v13, v11
    v_lshlrev_b32 v13, 4, v13
    """)
    for qq in range(8):
        a(f"ds_read_b128 v[{64+4*qq}:{67+4*qq}], v13 offset:{64*qq}")
    for r in range(12):
        a(f"v_mov_b32 v{100+r}, 0")
    a("s_waitcnt lgkmcnt(0)")
    def cexp_l(p, er, fi, o_r, o_i, t):
        return [f"v_mul_f32 v{t}, v{er}, v{p}", f"v_mul_f32 v{t+1}, v{fi}, v{p}", f"v_exp_f32 v{t}, v{t}",
                f"v_fract_f32 v{t+1}, v{t+1}", f"v_cos_f32 v{o_r}, v{t+1}", f"v_sin_f32 v{o_i}, v{t+1}",
                f"v_mul_f32 v{o_r}, v{t}, v{o_r}", f"v_mul_f32 v{o_i}, v{t}, v{o_i}"]
    for qq in range(8):
        er, fi, cr, ci = 64 + 4 * qq, 65 + 4 * qq, 66 + 4 * qq, 67 + 4 * qq
        par = qq & 1
        yb = 28 + 2 * par
        chains = [cexp_l(23, er, fi, yb, yb + 1, 32)]
        xbs = []
        for tl in range(3):
            t = 34 + 4 * tl; e_r, e_i = t + 2, t + 3
            xb = 46 + 6 * par + 2 * tl
            xbs.append(xb)
            chains.append(cexp_l(20 + tl, er, fi, e_r, e_i, t) + [
                f"v_mul_f32 v{xb}, v{cr}, v{e_r}", f"v_mul_f32 v{xb+1}, -v{cr}, v{e_i}",
                f"v_fma_f32 v{xb}, -v{ci}, v{e_i}, v{xb}", f"v_fma_f32 v{xb+1}, -v{ci}, v{e_r}, v{xb+1}"])
        interleave(a, chains)
        for h in range(2):
            for tl in range(3):
                a(f"v_mfma_f32_16x16x4_f32 v[{100+4*tl}:{103+4*tl}], v{xbs[tl]+h}, v{yb+h}, v[{100+4*tl}:{103+4*tl}]")
    a.stamp(3)
    a("""
    v_mul_u32_u24 v13, 3072, v12
    v_lshl_add_u32 v13, v11, 8, v13
    v_lshl_add_u32 v13, v10, 2, v13
    """)
    for tl in range(3):
        for r in range(4):
            a(f"ds_write_b32 v13, v{100+4*tl+r} offset:{2048 + tl*1024 + r*64}")
    a("s_waitcnt lgkmcnt(0)\ns_barrier")
    a.stamp(4)
    for e in range(8):
        for w in range(4):
            a(f"ds_read_b32 v{72+4*e+w}, v{112+e} offset:{2048 + 3072*w}")
    a("s_waitcnt lgkmcnt(0)")
    for e in range(8):
        b = 72 + 4 * e
        a(f"v_add_f32 v{b}, v{b}, v{b+1}\nv_add_f32 v{b+2}, v{b+2}, v{b+3}")
    for e in range(8):
        b = 72 + 4 * e
        a(f"v_add_f32 v{64+e}, v{b}, v{b+2}")
    a.stamp(5)
    a("""
    v_max3_f32 v14, abs(v64), abs(v65), abs(v66)
    v_max3_f32 v15, abs(v67), abs(v68), abs(v69)
    v_max3_f32 v14, abs(v70), abs(v71), v14
    v_max_f32 v14, v14, v15
    """)
    allreduce(a, [14], [15], op="v_max_f32")
    a("""
    v_lshlrev_b32 v16, 2, v12
    ds_write_b32 v16, v14 offset:14336
    s_waitcnt lgkmcnt(0)
    s_barrier
    v_mov_b32 v16, 0
    ds_read_b128 v[16:19], v16 offset:14336
    s_waitcnt lgkmcnt(0)
    v_max3_f32 v14, v16, v17, v18
    v_max_f32 v14, v14, v19
    v_frexp_exp_i32_f32 v15, v14
    v_mov_b32 v16, -100
    v_mov_b32 v17, 100
    v_med3_i32 v15, v15, v16, v17
    v_sub_u32 v16, 15, v15
    """)
    for e in range(8):
        a(f"v_ldexp_f32 v{64+e}, v{64+e}, v16")
    for e in range(8):
        a(f"v_cvt_f16_f32 v{64+e}, v{64+e}")
    for e in range(4):
        a(f"v_pack_b32_f16 v{72+e}, v{64+2*e}, v{65+2*e}")
    a("""
    s_lshl_b32 s3, s2, 12
    v_lshlrev_b32 v13, 4, v0
    v_add_u32 v13, s3, v13
    buffer_store_dwordx4 v[72:75], v13, s[36:39], 0 offen
    v_subrev_u32 v15, 15, v15
    v_ldexp_f32 v17, 1.0, v15
    s_lshl_b32 s3, s2, 2
    v_mov_b32 v18, s3
    v_cmp_eq_u32 vcc, 0, v0
    s_and_saveexec_b64 s[44:45], vcc
    buffer_store_dword v17, v18, s[40:43], 0 offen
    """)
    a.stamp(6)
    a.dump_stamps(7, 100, 0)
    a.rt_end(0)
    a("s_endpgm")
    a.label("K1_LN")
    a.hist = []
    a.stamp(0)
    a("""
    s_load_dwordx2 s[4:5], s[0:1], 0
    s_load_dwordx2 s[14:15], s[0:1], 112
    s_setprio 3
    s_mov_b32 s3, s2
    s_mov_b32 s50, 0x3727c5ac
    s_mov_b32 s51, 0x3b000000
    v_and_b32 v1, 63, v0
    v_lshrrev_b32 v2, 6, v0
    s_lshl_b32 s6, s3, 14
    v_lshlrev_b32 v3, 12, v2
    v_lshl_add_u32 v3, v1, 4, v3
    v_add_u32 v3, s6, v3
    s_waitcnt lgkmcnt(0)
    """)
    srd(a, 16, 4, 5, L * D * 2); srd(a, 20, 14, 15, L * D * 2, WS_UT)
    for k in range(4):
        a(f"buffer_load_dwordx4 v[{16+4*k}:{19+4*k}], v3, s[16:19], 0 offen offset:{1024*k}")
    a("s_waitcnt vmcnt(0)")
    for k in range(4):
        for e in range(4):
            a(f"v_lshlrev_b32 v{32+8*k+2*e}, 16, v{16+4*k+e}")
            a(f"v_and_b32 v{33+8*k+2*e}, 0xffff0000, v{16+4*k+e}")
    a.stamp(1)
    layernorm4(a, 32, 64, 50, 51)
    a.stamp(2)
    a("v_mul_u32_u24 v4, 264, v1\nv_lshl_add_u32 v4, v2, 3, v4")
    for c in range(8):
        a(f"v_cvt_pk_bf16_f32 v{16+2*c}, v{32+c}, v{40+c}")
        a(f"v_cvt_pk_bf16_f32 v{17+2*c}, v{48+c}, v{56+c}")
    for c in range(8):
        a(f"ds_write_b64 v4, v[{16+2*c}:{17+2*c}] offset:{32*c}")
    a("s_waitcnt lgkmcnt(0)\ns_barrier")
    a("""
    v_lshrrev_b32 v5, 1, v0
    v_lshlrev_b32 v6, 5, v5
    v_lshrrev_b32 v5, 3, v5
    v_lshl_add_u32 v6, v5, 3, v6
    v_and_b32 v5, 1, v0
    v_lshl_add_u32 v6, v5, 4, v6
    v_lshlrev_b32 v7, 4, v0
    v_add_u32 v7, s6, v7
    """)
    for i in range(4):
        a(f"ds_read_b64 v[{16+4*i}:{17+4*i}], v6 offset:{4224*i}")
        a(f"ds_read_b64 v[{18+4*i}:{19+4*i}], v6 offset:{4224*i+8}")
    a("s_waitcnt lgkmcnt(0)")
    for i in range(4):
        if i == 0:
            a(f"buffer_store_dwordx4 v[16:19], v7, s[20:23], 0 offen")
        else:
            a(f"v_add_u32 v7, 4096, v7")
            a(f"buffer_store_dwordx4 v[{16+4*i}:{19+4*i}], v7, s[20:23], 0 offen")
    a.stamp(3)
    a.dump_stamps(4, 100, 1)
    a.rt_end(0)
    a.label("K1_END")
    a("s_endpgm")
    return kd("k1_kernel", 120)

def main(out_path, diag=False):
    import gen2, gen4 as gen3, gen5
    Asm.DIAG = diag
    hdr = open("sequential_preLN__ssm_conv_s4d__mixer_channel_mlp__prompt.s.ref").read().split("; Override")[0]
    b = Asm()
    kds = []
    kds.append(gen5.gen_k2(b))
    import os
    MERGE3 = os.environ.get('MERGE3', '0') == '1'
    if not MERGE3: kds.append(gen5.gen_k3(b))
    k4, lds4 = gen3.gen_k4(b, MERGE3); kds.append(k4)
    k5, lds5 = gen3.gen_k5(b); kds.append(k5)
    launches = [("k2_kernel", 992, 256, gen5.K2_LDS),
                ("k4_kernel", 240, 512, lds4), ("k5_kernel", gen3.K5_WGS, 512, lds5)]
    if not MERGE3: launches.insert(1, ("k3_kernel", 128, 512, gen5.K3_LDS))
    a = Asm()
    a.raw(hdr.rstrip())
    for (n, g, bl, l) in launches:
        a.raw(f"; @launch kernel={n} grid=({g},1,1) block=({bl},1,1) lds={l}")
    a.raw('.amdgcn_target "amdgcn-amd-amdhsa--gfx950"')
    a.raw(".text")
    a.raw(b.text())
    a.raw('.section .rodata,"a"')
    for k in kds:
        a.raw(".p2align 6")
        a.raw(k)
    open(out_path, "w").write(a.text())
    print("nops inserted:", b.nops_inserted)

if __name__ == "__main__":
    main(sys.argv[1] if len(sys.argv) > 1 else "sequential_preLN__ssm_conv_s4d__mixer_channel_mlp__prompt.s", len(sys.argv) > 2)
```

```python
from asmlib import Asm
from gen import *
from gen5 import layernormN

WS_END = WS_HH + L * F * 2
def gen_gemm(a, name, *, RT, CT, BK, NST, NBUF, n_rt, n_ct, r_ws, r_ld, c_ws, c_ld, epi_pre, epilogue, last_c_limit=None, ln_phase=False, KSPLIT=False, LATE=True):
    SL = BK // 8; ROWB = BK * 2
    RBUF = RT * ROWB; CBUF = CT * ROWB; STG = RBUF + CBUF
    lds = NBUF * STG
    LNL = lds
    if ln_phase: lds += 17408
    npc = STG // 1024; nR = RBUF // 1024
    NP = (npc + 7) // 8
    rpp = 1024 // ROWB
    fr = RT // 32; fc = CT // 64
    KS = BK // 32
    fc2 = 2 * fc if KSPLIT else fc
    KSW = KS // 2 if KSPLIT else KS
    ACC = 24; nacc = fr * fc2 * 4
    FRG = ACC + nacc; nfr = (fr + fc2) * 4
    ADDR = FRG + KSW * nfr
    EPI = ADDR + 40
    vtop = max(EPI + max(16, 4 * fr), 96)
    xm = min(SL, 16) - 1
    kernel_header(a, name)
    a.rt_start()
    nwg = n_rt * n_ct
    a(f"""
    s_cmp_ge_u32 s2, {nwg}
    s_cbranch_scc1 {name}_END
    s_load_dwordx4 s[12:15], s[0:1], 104
    s_load_dwordx2 s[36:37], s[0:1], 0
    s_load_dwordx4 s[4:7], s[0:1], 72
    s_load_dwordx4 s[8:11], s[0:1], 88
    s_and_b32 s40, s2, {n_ct - 1}
    s_lshr_b32 s41, s2, {n_ct.bit_length() - 1}
    v_and_b32 v1, 63, v0
    v_lshrrev_b32 v2, 6, v0
    v_and_b32 v5, 15, v0
    v_bfe_u32 v6, v0, 4, 2
    {"v_bfe_u32 v7, v0, 7, 1" if KSPLIT else "v_lshrrev_b32 v7, 8, v0"}
    {"v_bfe_u32 v15, v0, 6, 1" if KSPLIT else "v_bfe_u32 v8, v0, 6, 2"}
    {"v_lshrrev_b32 v14, 8, v0" if KSPLIT else "s_nop 0"}
    {"v_lshl_add_u32 v8, v15, 1, v14" if KSPLIT else "s_nop 0"}
    v_readfirstlane_b32 s60, v2
    s_waitcnt lgkmcnt(0)
    """)
    a.stamp(0)
    srd(a, 16, 14, 15, WS_END)
    a("s_lshl_b32 s60, s60, 10")
    a(f"""
    v_lshrrev_b32 v3, {SL.bit_length() - 1}, v1
    v_and_b32 v4, {SL - 1}, v1
    s_mul_i32 s42, s41, {RT}
    s_mul_i32 s43, s40, {CT}
    s_mov_b32 s46, {r_ld}
    s_mov_b32 s47, {c_ld}
    s_mov_b32 s48, 0x{r_ws:x}
    s_mov_b32 s49, 0x{c_ws:x}
    """)
    vA = [ADDR + i for i in range(NP)]
    vAL = [ADDR + NP + i for i in range(NP)]
    for i in range(NP):
        a(f"""
        v_add_u32 v9, {8*i}, v2
        v_subrev_u32 v10, {npc}, v9
        v_cmp_gt_u32 vcc, {npc}, v9
        v_cndmask_b32 v9, v10, v9, vcc
        v_mul_u32_u24 v10, {rpp}, v9
        v_add_u32 v10, v10, v3
        v_and_b32 v11, {xm}, v10
        v_xor_b32 v11, v11, v4
        v_add_u32 v12, s42, v10
        v_mul_lo_u32 v12, v12, s46
        v_add_u32 v12, s48, v12
        v_subrev_u32 v13, {RT}, v10
        v_add_u32 v13, s43, v13
        v_mul_lo_u32 v13, v13, s47
        v_add_u32 v13, s49, v13
        v_cmp_gt_u32 s[50:51], {nR}, v9
        v_cndmask_b32 v12, v13, v12, s[50:51]
        v_lshl_add_u32 v{vA[i]}, v11, 4, v12
        """)
        if last_c_limit is not None:
            a(f"""
            v_cmp_le_u32 vcc, {last_c_limit}, v11
            s_andn2_b64 vcc, vcc, s[50:51]
            v_mov_b32 v13, 0x40000000
            v_cndmask_b32 v13, 0, v13, vcc
            v_add_u32 v{vAL[i]}, v{vA[i]}, v13
            """)
    for i in range(NP):
        a(f"""
        s_add_u32 s{64+i}, s60, {8192*i}
        s_cmp_ge_u32 s{64+i}, {STG}
        s_cselect_b32 s52, {STG}, 0
        s_sub_u32 s{64+i}, s{64+i}, s52
        """)
    issued = []
    if npc % 8 != 0:
        a(f"""
        s_cmp_lt_u32 s60, {(npc % 8) * 1024}
        s_cselect_b32 s54, -1, 0
        s_mov_b32 s55, s54
        """)
    def dma1(s, i):
        base = (s % NBUF) * STG
        va = vAL[i] if (last_c_limit is not None and s == NST - 1) else vA[i]
        a(f"s_add_u32 m0, s{64+i}, {base}")
        a(f"s_mov_b32 s44, {s * ROWB}")
        sc = " sc1" if (ln_phase and i > 0) else ""
        part = (npc % 8 != 0 and i == NP - 1)
        if part: a("s_mov_b64 exec, s[54:55]")
        a(f"buffer_load_dwordx4 v{va}, s[16:19], s44 offen{sc} lds")
        if part: a("s_mov_b64 exec, -1")
        issued.append(s)
    npre = min(NBUF - 1, NST)
    if not ln_phase:
        for s in range(1 if LATE else npre):
            for i in range(NP): dma1(s, i)
    else:
        assert nR >= 8
        for s in range(npre): dma1(s, 0)
        ln_block(a, name, LNL)
        for s in range(npre):
            for i in range(1, NP): dma1(s, i)
    vF = [ADDR + 2 * NP + ks for ks in range(KSW)]
    vG = [ADDR + 2 * NP + KSW + ks for ks in range(KSW)]
    assert 2 * NP + 6 * KSW <= 40
    for ks in range(KSW):
        a(f"""
        v_and_b32 v9, {xm}, v5
        v_xor_b32 v9, v9, v6
        v_xor_b32 v9, {8*ks if KSPLIT else 4*ks}, v9
        """)
        if KSPLIT:
            a("v_lshlrev_b32 v10, 2, v14\nv_xor_b32 v9, v9, v10")
        a(f"""
        v_lshlrev_b32 v9, 4, v9
        v_mul_u32_u24 v10, {RT//2}, v7
        v_add_u32 v10, v10, v5
        v_mul_u32_u24 v10, {ROWB}, v10
        v_add_u32 v{vF[ks]}, v9, v10
        v_mul_u32_u24 v10, {CT//2 if KSPLIT else CT//4}, v{15 if KSPLIT else 8}
        v_add_u32 v10, v10, v5
        v_mul_u32_u24 v10, {ROWB}, v10
        v_add_u32 v10, v9, v10
        v_add_u32 v{vG[ks]}, {RBUF}, v10
        v_add_u32 v{vF[ks] + 2*KSW}, 0x10000, v{vF[ks]}
        v_add_u32 v{vG[ks] + 2*KSW}, 0x10000, v{vG[ks]}
        v_add_u32 v{vF[ks] + 4*KSW}, 0x20000, v{vF[ks]}
        v_add_u32 v{vG[ks] + 4*KSW}, 0x20000, v{vG[ks]}
        """)
    for r in range(nacc):
        a(f"v_mov_b32 v{ACC + r}, 0")
    def frg(ks, j): b = FRG + ks * nfr + 4 * j; return f"v[{b}:{b+3}]"
    def fread(s, ks):
        base = (s % NBUF) * STG
        for t in range(fr):
            off = base + 16 * t * ROWB
            a(f"ds_read_b128 {frg(ks, t)}, v{vF[ks] + 2*KSW*(off >> 16)} offset:{off & 0xffff}")
        for t in range(fc2):
            off = base + 16 * t * ROWB
            a(f"ds_read_b128 {frg(ks, fr + t)}, v{vG[ks] + 2*KSW*(off >> 16)} offset:{off & 0xffff}")
    def accr(i, j): b = ACC + 4 * ((j // fc) * fr * fc + i * fc + (j % fc)); return f"v[{b}:{b+3}]"
    nf = fr + fc2
    P = dict(ACC=ACC, fr=fr, fc=fc, RT=RT, CT=CT, FRG=FRG, ADDR=ADDR, EPI=EPI)
    n_e = epi_pre(a, P)
    issued.extend(["e"] * n_e)
    if LATE and not ln_phase:
        for s in range(1, npre):
            for i in range(NP): dma1(s, i)
    for s in range(NST):
        dg = (s == 4)
        inflight_after = min(NST - 1, s + NBUF - 2) - s
        lastpos = max(k for k, t in enumerate(issued) if t == s)
        a(f"s_waitcnt vmcnt({len(issued) - 1 - lastpos})")
        a("s_barrier")
        if s == 0: a.stamp(1)
        if dg: a.stamp(4)
        for ks in range(KSW): fread(s, ks)
        M = KSW * fr * fc2
        sn = s + NBUF - 1
        npairs = NP if sn < NST else 0
        done = 0; mcount = 0
        for ks in range(KSW):
            a(f"s_waitcnt lgkmcnt({min(15, nf * (KSW - 1 - ks))})")
            if dg: a.stamp(5 + ks)
            for i in range(fr):
                for j in range(fc2):
                    a(f"v_mfma_f32_16x16x32_bf16 {accr(i, j)}, {frg(ks, i)}, {frg(ks, fr + j)}, {accr(i, j)}")
                    mcount += 1
                    while done < npairs and done * M < mcount * npairs:
                        dma1(sn, done); done += 1
        assert done == npairs
        if dg: a.stamp(13)
    a.stamp(2)
    if KSPLIT:
        half = fr * fc * 4
        SZ = half * 256
        lo, hi = ACC, ACC + half
        a.fence(12)
        a(f"""
        s_barrier
        v_and_b32 v9, 3, v2
        v_mul_u32_u24 v9, {SZ}, v9
        v_lshl_add_u32 v9, v1, 4, v9
        s_cmp_ge_u32 s60, 4096
        s_cbranch_scc1 {name}_XG1
        """)
        for t in range(half // 4):
            a(f"ds_write_b128 v9, v[{hi+4*t}:{hi+4*t+3}] offset:{1024*t}")
        a("s_waitcnt lgkmcnt(0)\ns_barrier")
        for t in range(half // 4):
            a(f"ds_read_b128 v[{hi+4*t}:{hi+4*t+3}], v9 offset:{4*SZ + 1024*t}")
        a(f"s_waitcnt lgkmcnt(0)\ns_branch {name}_XD")
        a.label(f"{name}_XG1")
        for t in range(half // 4):
            a(f"ds_write_b128 v9, v[{lo+4*t}:{lo+4*t+3}] offset:{4*SZ + 1024*t}")
        a("s_waitcnt lgkmcnt(0)\ns_barrier")
        for t in range(half // 4):
            a(f"ds_read_b128 v[{lo+4*t}:{lo+4*t+3}], v9 offset:{1024*t}")
        a("s_waitcnt lgkmcnt(0)")
        a.label(f"{name}_XD", fence=False)
        for r in range(half):
            a(f"v_add_f32 v{lo+r}, v{lo+r}, v{hi+r}")
    epilogue(a, P)
    a.stamp(3)
    a.dump_stamps(14, 100, 4 if name.startswith("k4") else 5)
    a.rt_end(1 if name.startswith("k4") else 2)
    a.label(f"{name}_END")
    a("s_endpgm")
    return kd(name, vtop), lds

def ln_block(a, name, LNL):
    a(f"""
    s_cmp_ge_u32 s2, 128
    s_cbranch_scc1 {name}_NOLN
    s_mov_b32 s50, 0x3727c5ac
    s_mov_b32 s51, 0x3b000000
    s_lshl_b32 s53, s2, 14
    v_lshlrev_b32 v9, 11, v2
    v_lshl_add_u32 v9, v1, 4, v9
    v_add_u32 v9, s53, v9
    v_lshlrev_b32 v10, 4, v0
    v_add_u32 v10, s53, v10
    v_add_u32 v11, 8192, v10
    """)
    srd(a, 20, 14, 15, L * D * 2, WS_T3)
    a("""
    buffer_load_dwordx4 v[72:75], v10, s[20:23], 0 offen
    buffer_load_dwordx4 v[76:79], v11, s[20:23], 0 offen
    """)
    srd(a, 24, 36, 37, L * D * 2)
    for k in range(2):
        a(f"buffer_load_dwordx4 v[{16+4*k}:{19+4*k}], v9, s[24:27], 0 offen offset:{1024*k}")
    srd(a, 24, 14, 15, L * D * 2, WS_H); srd(a, 28, 14, 15, L * D * 2, WS_Z)
    a(f"""
    v_lshrrev_b32 v12, 1, v0
    v_lshlrev_b32 v13, 5, v12
    v_lshrrev_b32 v12, 3, v12
    v_lshl_add_u32 v13, v12, 3, v13
    v_and_b32 v12, 1, v0
    v_lshl_add_u32 v13, v12, 4, v13
    v_add_u32 v13, {LNL}, v13
    v_mul_u32_u24 v14, 264, v1
    v_lshl_add_u32 v14, v2, 2, v14
    v_add_u32 v14, {LNL}, v14
    s_waitcnt vmcnt(2)
    """)
    for i in range(2):
        a(f"ds_write_b64 v13, v[{72+4*i}:{73+4*i}] offset:{8448*i}")
        a(f"ds_write_b64 v13, v[{74+4*i}:{75+4*i}] offset:{8448*i+8}")
    a("s_waitcnt lgkmcnt(0)\ns_barrier")
    for c in range(8):
        a(f"ds_read_b32 v{72+c}, v14 offset:{32*c}")
    a("s_waitcnt vmcnt(0) lgkmcnt(0)")
    for k in range(2):
        for e in range(4):
            a(f"v_lshlrev_b32 v{32+8*k+2*e}, 16, v{16+4*k+e}")
            a(f"v_and_b32 v{33+8*k+2*e}, 0xffff0000, v{16+4*k+e}")
    for c in range(8):
        a(f"v_lshlrev_b32 v{48+c}, 16, v{72+c}\nv_and_b32 v{56+c}, 0xffff0000, v{72+c}")
    for c in range(8):
        a(f"v_add_f32 v{32+c}, v{32+c}, v{48+c}\nv_add_f32 v{40+c}, v{40+c}, v{56+c}")
    for k in range(2):
        for e in range(4):
            a(f"v_cvt_pk_bf16_f32 v{16+4*k+e}, v{32+8*k+2*e}, v{33+8*k+2*e}")
    for k in range(2):
        for e in range(4):
            a(f"v_lshlrev_b32 v{32+8*k+2*e}, 16, v{16+4*k+e}")
            a(f"v_and_b32 v{33+8*k+2*e}, 0xffff0000, v{16+4*k+e}")
    for k in range(2):
        a(f"buffer_store_dwordx4 v[{16+4*k}:{19+4*k}], v9, s[24:27], 0 offen offset:{1024*k}")
    layernormN(a, 2, 32, 48, 50, 51)
    layernormN(a, 2, 32, 48, 50, 51)
    for k in range(2):
        for e in range(4):
            a(f"v_cvt_pk_bf16_f32 v{72+4*k+e}, v{32+8*k+2*e}, v{33+8*k+2*e}")
    for k in range(2):
        a(f"buffer_store_dwordx4 v[{72+4*k}:{75+4*k}], v9, s[28:31], 0 offen offset:{1024*k} sc1")
    srd(a, 20, 12, 13, 256)
    a(f"""
    s_waitcnt vmcnt(0)
    s_barrier
    s_lshr_b32 s53, s2, 3
    s_lshl_b32 s53, s53, 2
    v_mov_b32 v10, s53
    v_mov_b32 v11, 1
    v_cmp_eq_u32 vcc, 0, v0
    s_and_saveexec_b64 s[30:31], vcc
    buffer_atomic_add v11, v10, s[20:23], 0 offen sc1
    s_mov_b64 exec, s[30:31]
    """)
    a.label(f"{name}_NOLN", fence=True)
    srd(a, 20, 12, 13, 256)
    a(f"""
    s_cmp_lg_u32 s60, 0
    s_cbranch_scc1 {name}_NOPOLL
    s_lshl_b32 s53, s40, 2
    v_mov_b32 v10, s53
    """)
    a.label(f"{name}_POLL")
    a(f"""
    buffer_load_dword v11, v10, s[20:23], 0 offen sc1
    s_waitcnt vmcnt(0)
    v_readfirstlane_b32 s53, v11
    s_cmp_ge_u32 s53, 8
    s_cbranch_scc1 {name}_NOPOLL
    s_sleep 16
    """)
    a.branch_back("s_branch", f"{name}_POLL")
    a.label(f"{name}_NOPOLL", fence=True)
    a("s_barrier")

def pre_k4(a, P):
    RT, CT, E = P["RT"], P["CT"], P["EPI"]
    srd(a, 24, 4, 5, F * 2)
    srd(a, 28, 14, 15, L * F * 2, WS_HH)
    a(f"""
    s_mul_i32 s42, s41, {RT}
    v_mul_u32_u24 v9, {RT//2}, v7
    v_lshl_add_u32 v9, v6, 2, v9
    v_add_u32 v9, s42, v9
    s_mul_i32 s42, s40, {CT}
    v_mul_u32_u24 v10, {CT//4}, v8
    v_add_u32 v10, v10, v5
    v_add_u32 v10, s42, v10
    s_mov_b32 s43, {F*2}
    v_mul_lo_u32 v10, v10, s43
    v_lshlrev_b32 v11, 1, v9
    v_add_u32 v10, v10, v11
    s_mov_b32 s45, 0x3d372713
    s_mov_b32 s46, 0xc0135761
    """)
    for i in range(P["fr"]):
        a(f"buffer_load_dwordx2 v[{E+2*i}:{E+2*i+1}], v11, s[24:27], 0 offen offset:{32*i}")
    return P["fr"]

def epi_k4(a, P):
    ACC, fr, fc, RT, CT, E = P["ACC"], P["fr"], P["fc"], P["RT"], P["CT"], P["EPI"]
    B = P["FRG"]
    for i in range(fr):
        a(f"""
        v_lshlrev_b32 v{B+4*i}, 16, v{E+2*i}
        v_and_b32 v{B+4*i+1}, 0xffff0000, v{E+2*i}
        v_lshlrev_b32 v{B+4*i+2}, 16, v{E+2*i+1}
        v_and_b32 v{B+4*i+3}, 0xffff0000, v{E+2*i+1}
        """)
    W0 = B + 4 * fr
    chains = []
    for i in range(fr):
        for j in range(fc):
            b = ACC + 4 * (i * fc + j)
            for h in range(2):
                x, y = b + 2 * h, b + 2 * h + 1
                W = W0 + 2 * (2 * (i * fc + j) + h)
                ch = bf16r_pair_l(x, y, W)
                ch += [f"v_add_f32 v{x}, v{x}, v{B+4*i+2*h}", f"v_add_f32 v{y}, v{y}, v{B+4*i+2*h+1}"]
                ch += bf16r_pair_l(x, y, W)
                ch += f"""
                v_mul_f32 v{W}, v{x}, v{x}
                v_mul_f32 v{W+1}, v{y}, v{y}
                v_mul_f32 v{W}, s45, v{W}
                v_mul_f32 v{W+1}, s45, v{W+1}
                v_fma_f32 v{W}, v{W}, v{x}, v{x}
                v_fma_f32 v{W+1}, v{W+1}, v{y}, v{y}
                v_mul_f32 v{W}, s46, v{W}
                v_mul_f32 v{W+1}, s46, v{W+1}
                v_exp_f32 v{W}, v{W}
                v_exp_f32 v{W+1}, v{W+1}
                v_add_f32 v{W}, 1.0, v{W}
                v_add_f32 v{W+1}, 1.0, v{W+1}
                v_rcp_f32 v{W}, v{W}
                v_rcp_f32 v{W+1}, v{W+1}
                v_mul_f32 v{x}, v{x}, v{W}
                v_mul_f32 v{y}, v{y}, v{W+1}
                v_cvt_pk_bf16_f32 v{b+h}, v{x}, v{y}
                """.split("\n")
                chains.append(ch)
    chains2 = []
    for ci, ch in enumerate(chains):
        chains2.append(ch)
    interleave(a, [c[:-2] for c in chains2])
    O0 = W0
    for i in range(fr):
        for j in range(fc):
            b = ACC + 4 * (i * fc + j)
            O = O0 + 2 * (i * fc + j) * 2
            a(f"v_cvt_pk_bf16_f32 v{O}, v{b}, v{b+1}")
            a(f"v_cvt_pk_bf16_f32 v{O+1}, v{b+2}, v{b+3}")
    for i in range(fr):
        a(f"""
        v_add_u32 v12, {16*i}, v9
        v_cmp_gt_u32 vcc, {F}, v12
        s_and_saveexec_b64 s[48:49], vcc
        """)
        for j in range(fc):
            O = O0 + 2 * (i * fc + j) * 2
            off = 16 * j * F * 2 + 32 * i
            so = off & ~0xfff
            if so:
                a(f"s_mov_b32 s44, {so}")
                a(f"buffer_store_dwordx2 v[{O}:{O+1}], v10, s[28:31], s44 offen offset:{off - so}{SFLAG}")
            else:
                a(f"buffer_store_dwordx2 v[{O}:{O+1}], v10, s[28:31], 0 offen offset:{off}{SFLAG}")
        a("s_mov_b64 exec, s[48:49]")

def pre_k5(a, P):
    RT, CT, E, fr, fc = P["RT"], P["CT"], P["EPI"], P["fr"], P["fc"]
    srd(a, 24, 8, 9, D * 2)
    srd(a, 28, 14, 15, L * D * 2, WS_H)
    srd(a, 32, 10, 11, L * D * 2)
    a(f"""
    s_mul_i32 s42, s41, {RT}
    v_mul_u32_u24 v9, {RT//2}, v7
    v_lshl_add_u32 v9, v6, 2, v9
    v_add_u32 v9, s42, v9
    s_mul_i32 s42, s40, {CT}
    v_mul_u32_u24 v10, {CT//4}, v8
    v_add_u32 v10, v10, v5
    v_add_u32 v10, s42, v10
    v_lshlrev_b32 v10, 10, v10
    v_lshlrev_b32 v11, 1, v9
    v_add_u32 v10, v10, v11
    """)
    for i in range(fr):
        a(f"buffer_load_dwordx2 v[{E+2*i}:{E+2*i+1}], v11, s[24:27], 0 offen offset:{32*i}")
    Hh = E + 2 * fr
    for i in range(fr):
        for j in range(fc):
            q = Hh + 2 * (i * fc + j)
            a(f"buffer_load_dwordx2 v[{q}:{q+1}], v10, s[28:31], 0 offen offset:{32*i}")
            assert fc == 1
    return fr + fr * fc

def epi_k5(a, P):
    ACC, fr, fc, RT, CT, E = P["ACC"], P["fr"], P["fc"], P["RT"], P["CT"], P["EPI"]
    T = E; Hh = E + 2 * fr
    W0 = P["FRG"]
    chains = []
    for i in range(fr):
        for j in range(fc):
            b = ACC + 4 * (i * fc + j); q = Hh + 2 * (i * fc + j)
            for h in range(2):
                x, y = b + 2 * h, b + 2 * h + 1
                W = W0 + 4 * (i * fc + j) + 2 * h
                ch = bf16r_pair_l(x, y, W)
                ch += [f"v_lshlrev_b32 v{W}, 16, v{T+2*i+h}", f"v_and_b32 v{W+1}, 0xffff0000, v{T+2*i+h}",
                       f"v_add_f32 v{x}, v{x}, v{W}", f"v_add_f32 v{y}, v{y}, v{W+1}"]
                ch += bf16r_pair_l(x, y, W)
                ch += [f"v_lshlrev_b32 v{W}, 16, v{q+h}", f"v_and_b32 v{W+1}, 0xffff0000, v{q+h}",
                       f"v_add_f32 v{x}, v{x}, v{W}", f"v_add_f32 v{y}, v{y}, v{W+1}",
                       f"v_cvt_pk_bf16_f32 v{q+h}, v{x}, v{y}"]
                chains.append(ch)
    interleave(a, chains)
    for i in range(fr):
        q = Hh + 2 * i
        a(f"buffer_store_dwordx2 v[{q}:{q+1}], v10, s[32:35], 0 offen offset:{32*i}")

def gen_k4(a, merge=False):
    return gen_gemm(a, "k4_kernel", RT=96, CT=128, BK=64, NST=8, NBUF=5, n_rt=15, n_ct=16,
                    r_ws=WS_W1T, r_ld=D * 2, c_ws=WS_Z, c_ld=D * 2, epi_pre=pre_k4, epilogue=epi_k4, ln_phase=merge)
K5_WGS = 256
def gen_k5(a):
    return gen_gemm(a, "k5_kernel", RT=64, CT=64, BK=128, NST=11, NBUF=4, n_rt=8, n_ct=32,
                    r_ws=WS_W2T, r_ld=FP * 2, c_ws=WS_HH, c_ld=F * 2,
                    epi_pre=pre_k5, epilogue=epi_k5, last_c_limit=12)
```

```python
from asmlib import Asm
from gen import *

def layernormN(a, NT, V, S, sEps, sInvD):
    R = range(NT)
    sm = [S + i for i in R]; tm = [S + NT + i for i in R]; q = [S + 2 * NT + i for i in R]
    rr = [S + 3 * NT + i for i in R]; sd = [S + 4 * NT + i for i in R]; T = S + 5 * NT
    for k in R:
        b = V + 8 * k
        a(f"v_add_f32 v{sm[k]}, v{b}, v{b+1}\nv_add_f32 v{tm[k]}, v{b+2}, v{b+3}\nv_add_f32 v{q[k]}, v{b+4}, v{b+5}\nv_add_f32 v{rr[k]}, v{b+6}, v{b+7}")
    for k in R:
        a(f"v_add_f32 v{sm[k]}, v{sm[k]}, v{tm[k]}\nv_add_f32 v{q[k]}, v{q[k]}, v{rr[k]}")
    for k in R:
        a(f"v_add_f32 v{sm[k]}, v{sm[k]}, v{q[k]}")
    allreduce(a, sm, tm)
    for k in R:
        a(f"v_mul_f32 v{sm[k]}, s{sInvD}, v{sm[k]}")
    chains = []
    for k in R:
        b = V + 8 * k
        for half in range(2):
            t = tm[k] if half == 0 else rr[k]; acc = q[k] if half == 0 else sd[k]
            ch = []
            for c in range(4):
                ch.append(f"v_sub_f32 v{t}, v{b+4*half+c}, v{sm[k]}")
                ch.append(f"v_mul_f32 v{acc}, v{t}, v{t}" if c == 0 else f"v_fmac_f32 v{acc}, v{t}, v{t}")
            chains.append(ch)
    interleave(a, chains)
    for k in R:
        a(f"v_add_f32 v{q[k]}, v{q[k]}, v{sd[k]}")
    allreduce(a, q, tm)
    for k in R:
        a(f"v_mul_f32 v{q[k]}, s{sInvD}, v{q[k]}")
    interleave(a, [bf16r_pair_l(sm[k], q[k], tm[k]) for k in R])
    for k in R:
        a(f"v_add_f32 v{q[k]}, s{sEps}, v{q[k]}")
    interleave(a, [bf16r_pair_l(q[k], q[k + 1], tm[k]) for k in range(0, NT, 2)])
    for k in R: a(f"v_sqrt_f32 v{sd[k]}, v{q[k]}")
    for k in R: a(f"v_rcp_f32 v{rr[k]}, v{sd[k]}")
    for k in R: a(f"v_fma_f32 v{tm[k]}, -v{sd[k]}, v{sd[k]}, v{q[k]}")
    for k in R: a(f"v_mul_f32 v{rr[k]}, 0.5, v{rr[k]}")
    for k in R: a(f"v_fma_f32 v{sd[k]}, v{tm[k]}, v{rr[k]}, v{sd[k]}")
    interleave(a, [bf16r_pair_l(sd[k], sd[k + 1], tm[k]) for k in range(0, NT, 2)])
    for k in R: a(f"v_rcp_f32 v{rr[k]}, v{sd[k]}")
    for k in R: a(f"v_fma_f32 v{tm[k]}, -v{sd[k]}, v{rr[k]}, 1.0")
    for k in R: a(f"v_fma_f32 v{rr[k]}, v{tm[k]}, v{rr[k]}, v{rr[k]}")
    chains = []
    for k in R:
        b = V + 8 * k
        for half in range(2):
            t0, t1 = T + 4 * k + 2 * half, T + 4 * k + 2 * half + 1
            ch = []
            for c in range(4 * half, 4 * half + 4, 2):
                x, y = b + c, b + c + 1
                ch += [f"v_sub_f32 v{x}, v{x}, v{sm[k]}", f"v_sub_f32 v{y}, v{y}, v{sm[k]}"]
                ch += bf16r_pair_l(x, y, t0)
                ch += [f"v_mul_f32 v{t0}, v{x}, v{rr[k]}", f"v_mul_f32 v{t1}, v{y}, v{rr[k]}",
                       f"v_fma_f32 v{x}, -v{t0}, v{sd[k]}, v{x}", f"v_fma_f32 v{y}, -v{t1}, v{sd[k]}, v{y}",
                       f"v_fma_f32 v{x}, v{x}, v{rr[k]}, v{t0}", f"v_fma_f32 v{y}, v{y}, v{rr[k]}, v{t1}"]
                ch += bf16r_pair_l(x, y, t0)
            chains.append(ch)
    interleave(a, chains)

K1_LDS = 18432
def gen_k1(a):
    kernel_header(a, "k1_kernel")
    a.rt_start()
    a("""
    s_cmp_ge_u32 s2, 304
    s_cbranch_scc1 K1_END
    s_cmp_ge_u32 s2, 128
    s_cbranch_scc1 K1_TR
    s_load_dwordx2 s[4:5], s[0:1], 0
    s_load_dwordx2 s[14:15], s[0:1], 112
    s_mov_b32 s50, 0x3727c5ac
    s_mov_b32 s51, 0x3b000000
    v_and_b32 v1, 63, v0
    v_lshrrev_b32 v2, 6, v0
    s_lshl_b32 s6, s2, 14
    v_lshlrev_b32 v3, 11, v2
    v_lshl_add_u32 v3, v1, 4, v3
    v_add_u32 v3, s6, v3
    s_waitcnt lgkmcnt(0)
    """)
    srd(a, 16, 4, 5, L * D * 2)
    for k in range(2):
        a(f"buffer_load_dwordx4 v[{16+4*k}:{19+4*k}], v3, s[16:19], 0 offen offset:{1024*k}")
    srd(a, 20, 14, 15, L * D * 2, WS_UT)
    a("""
    v_mul_u32_u24 v4, 264, v1
    v_lshl_add_u32 v4, v2, 2, v4
    v_lshrrev_b32 v5, 1, v0
    v_lshlrev_b32 v6, 5, v5
    v_lshrrev_b32 v5, 3, v5
    v_lshl_add_u32 v6, v5, 3, v6
    v_and_b32 v5, 1, v0
    v_lshl_add_u32 v6, v5, 4, v6
    v_lshlrev_b32 v7, 4, v0
    v_add_u32 v7, s6, v7
    v_add_u32 v8, 8192, v7
    s_waitcnt vmcnt(0)
    """)
    for k in range(2):
        for e in range(4):
            a(f"v_lshlrev_b32 v{32+8*k+2*e}, 16, v{16+4*k+e}")
            a(f"v_and_b32 v{33+8*k+2*e}, 0xffff0000, v{16+4*k+e}")
    layernormN(a, 2, 32, 48, 50, 51)
    for c in range(8):
        a(f"v_cvt_pk_bf16_f32 v{16+c}, v{32+c}, v{40+c}")
    for c in range(8):
        a(f"ds_write_b32 v4, v{16+c} offset:{32*c}")
    a("s_waitcnt lgkmcnt(0)\ns_barrier")
    for i in range(2):
        a(f"ds_read_b64 v[{16+4*i}:{17+4*i}], v6 offset:{8448*i}")
        a(f"ds_read_b64 v[{18+4*i}:{19+4*i}], v6 offset:{8448*i+8}")
    a("""
    s_waitcnt lgkmcnt(0)
    buffer_store_dwordx4 v[16:19], v7, s[20:23], 0 offen
    buffer_store_dwordx4 v[20:23], v8, s[20:23], 0 offen
    """)
    a.rt_end(0)
    a("s_endpgm")
    gen_tr(a)
    a.label("K1_END")
    a("s_endpgm")
    return kd("k1_kernel", 72)

K3_LDS = 17408
def gen_k3(a):
    kernel_header(a, "k3_kernel")
    a.rt_start()
    a("""
    s_cmp_ge_u32 s2, 128
    s_cbranch_scc1 K3_END
    s_load_dwordx2 s[4:5], s[0:1], 0
    s_load_dwordx2 s[14:15], s[0:1], 112
    s_mov_b32 s50, 0x3727c5ac
    s_mov_b32 s51, 0x3b000000
    v_and_b32 v1, 63, v0
    v_lshrrev_b32 v2, 6, v0
    s_lshl_b32 s6, s2, 14
    v_lshlrev_b32 v3, 11, v2
    v_lshl_add_u32 v3, v1, 4, v3
    v_add_u32 v3, s6, v3
    v_lshlrev_b32 v7, 4, v0
    v_add_u32 v7, s6, v7
    v_add_u32 v8, 8192, v7
    s_waitcnt lgkmcnt(0)
    """)
    srd(a, 20, 14, 15, L * D * 2, WS_T3)
    a("""
    buffer_load_dwordx4 v[72:75], v7, s[20:23], 0 offen
    buffer_load_dwordx4 v[76:79], v8, s[20:23], 0 offen
    """)
    srd(a, 16, 4, 5, L * D * 2)
    for k in range(2):
        a(f"buffer_load_dwordx4 v[{16+4*k}:{19+4*k}], v3, s[16:19], 0 offen offset:{1024*k}")
    srd(a, 24, 14, 15, L * D * 2, WS_H); srd(a, 28, 14, 15, L * D * 2, WS_Z)
    a("""
    v_lshrrev_b32 v5, 1, v0
    v_lshlrev_b32 v6, 5, v5
    v_lshrrev_b32 v5, 3, v5
    v_lshl_add_u32 v6, v5, 3, v6
    v_and_b32 v5, 1, v0
    v_lshl_add_u32 v6, v5, 4, v6
    v_mul_u32_u24 v4, 264, v1
    v_lshl_add_u32 v4, v2, 2, v4
    s_waitcnt vmcnt(2)
    """)
    for i in range(2):
        a(f"ds_write_b64 v6, v[{72+4*i}:{73+4*i}] offset:{8448*i}")
        a(f"ds_write_b64 v6, v[{74+4*i}:{75+4*i}] offset:{8448*i+8}")
    a("s_waitcnt lgkmcnt(0)\ns_barrier")
    for c in range(8):
        a(f"ds_read_b32 v{72+c}, v4 offset:{32*c}")
    a("s_waitcnt vmcnt(0) lgkmcnt(0)")
    for k in range(2):
        for e in range(4):
            a(f"v_lshlrev_b32 v{32+8*k+2*e}, 16, v{16+4*k+e}")
            a(f"v_and_b32 v{33+8*k+2*e}, 0xffff0000, v{16+4*k+e}")
    for c in range(8):
        a(f"v_lshlrev_b32 v{48+c}, 16, v{72+c}\nv_and_b32 v{56+c}, 0xffff0000, v{72+c}")
    for c in range(8):
        a(f"v_add_f32 v{32+c}, v{32+c}, v{48+c}\nv_add_f32 v{40+c}, v{40+c}, v{56+c}")
    for k in range(2):
        for e in range(4):
            a(f"v_cvt_pk_bf16_f32 v{16+4*k+e}, v{32+8*k+2*e}, v{33+8*k+2*e}")
    for k in range(2):
        for e in range(4):
            a(f"v_lshlrev_b32 v{32+8*k+2*e}, 16, v{16+4*k+e}")
            a(f"v_and_b32 v{33+8*k+2*e}, 0xffff0000, v{16+4*k+e}")
    for k in range(2):
        a(f"buffer_store_dwordx4 v[{16+4*k}:{19+4*k}], v3, s[24:27], 0 offen offset:{1024*k}{SFLAG}")
    layernormN(a, 2, 32, 48, 50, 51)
    layernormN(a, 2, 32, 48, 50, 51)
    for k in range(2):
        for e in range(4):
            a(f"v_cvt_pk_bf16_f32 v{72+4*k+e}, v{32+8*k+2*e}, v{33+8*k+2*e}")
    for k in range(2):
        a(f"buffer_store_dwordx4 v[{72+4*k}:{75+4*k}], v3, s[28:31], 0 offen offset:{1024*k}{SFLAG}")
    a.rt_end(1)
    a.label("K3_END")
    a("s_endpgm")
    return kd("k3_kernel", 80)

U_OFF = 256; U_RS = 160; KC_OFF = 7936; KC_CS = 4288
K2_LDS = KC_OFF + 8 * KC_CS
RED_WS = 8704; RED_RS = 272
PARAM = KC_OFF + 4 * KC_CS; PART = PARAM + 2048; MAXS = 0
def gen_k2(a):
    import gen2
    kernel_header(a, "k2_kernel")
    a.rt_start()
    a("""
    s_cmp_ge_u32 s2, 992
    s_cbranch_scc1 K2_END
    s_cmp_ge_u32 s2, 640
    s_cbranch_scc1 K2_TR
    s_cmp_ge_u32 s2, 512
    s_cbranch_scc1 K2_LN
    s_load_dwordx4 s[4:7], s[0:1], 8
    s_load_dwordx4 s[8:11], s[0:1], 24
    s_load_dwordx4 s[36:39], s[0:1], 40
    s_load_dwordx4 s[12:15], s[0:1], 104
    s_mov_b32 s50, 0x%x
    s_mov_b32 s51, 0x%x
    s_mov_b32 s52, 0x%x
    s_mov_b32 s53, 0x%x
    v_and_b32 v1, 127, v0
    v_lshlrev_b32 v1, 1, v1
    s_lshl_b32 s3, s2, 8
    v_add_u32 v1, s3, v1
    s_lshl_b32 s3, s2, 1
    v_mov_b32 v7, s3
    v_lshrrev_b32 v150, 1, v0
    v_lshlrev_b32 v150, 14, v150
    v_and_b32 v3, 1, v0
    v_lshl_add_u32 v150, v3, 4, v150
    s_lshl_b32 s3, s2, 5
    v_add_u32 v150, s3, v150
    s_waitcnt lgkmcnt(0)
    """ % (L2E, L2E_LO, LN2, INV2PI))
    a.stamp(0)
    srd(a, 32, 36, 37, D * 2)
    a("buffer_load_ushort v6, v7, s[32:35], 0 offen")
    srd(a, 16, 4, 5, D * N * 2)
    a("buffer_load_ushort v2, v1, s[16:19], 0 offen")
    srd(a, 20, 6, 7, D * N * 2)
    a("buffer_load_ushort v3, v1, s[20:23], 0 offen")
    srd(a, 24, 8, 9, D * N * 2)
    a("buffer_load_ushort v4, v1, s[24:27], 0 offen")
    srd(a, 28, 10, 11, D * N * 2)
    a("buffer_load_ushort v5, v1, s[28:31], 0 offen")
    srd(a, 40, 14, 15, D * L * 2, WS_UT)
    srd(a, 32, 38, 39, D * 2)
    a("buffer_load_ushort v152, v7, s[32:35], 0 offen")
    srd(a, 44, 14, 15, D * L * 2, WS_T3)
    a("""
    v_mov_b32 v40, 0
    v_mov_b32 v41, 0
    v_mov_b32 v42, 0
    v_mov_b32 v43, 0
    v_lshlrev_b32 v151, 4, v0
    v_cmp_gt_u32 vcc, 166, v0
    s_and_saveexec_b64 s[48:49], vcc
    ds_write_b128 v151, v[40:43]
    s_mov_b64 exec, s[48:49]
    v_and_b32 v10, 15, v0
    v_bfe_u32 v11, v0, 4, 2
    v_lshrrev_b32 v12, 6, v0
    v_lshrrev_b32 v13, 3, v10
    v_and_b32 v14, 7, v10
    v_lshl_add_u32 v20, v13, 7, v14
    v_lshrrev_b32 v13, 2, v10
    v_and_b32 v14, 3, v10
    v_lshlrev_b32 v13, 7, v13
    v_lshl_add_u32 v13, v14, 1, v13
    v_add_u32 v13, 256, v13
    v_subrev_u32 v14, 8, v10
    v_lshrrev_b32 v15, 1, v14
    v_and_b32 v14, 1, v14
    v_lshlrev_b32 v15, 7, v15
    v_lshl_add_u32 v15, v14, 2, v15
    v_add_u32 v15, 512, v15
    v_cmp_gt_u32 vcc, 8, v10
    v_cndmask_b32 v21, v15, v13, vcc
    v_lshlrev_b32 v13, 7, v10
    v_add_u32 v13, 1024, v13
    v_cmp_gt_u32 vcc, 9, v10
    v_cndmask_b32 v22, 0, v13, vcc
    v_lshlrev_b32 v23, 3, v10
    v_cvt_f32_u32 v20, v20
    v_cvt_f32_u32 v21, v21
    v_cvt_f32_u32 v22, v22
    v_cvt_f32_u32 v23, v23
    v_lshlrev_b32 v13, 3, v0
    v_sub_u32 v13, 2047, v13
    """)
    chains = []
    for e in range(8):
        t = 64 + 6 * e; m = 54 + 2 * e
        chains.append(f"""
        v_subrev_u32 v{t}, {e}, v13
        v_cvt_f32_u32 v{t}, v{t}
        v_cvt_pk_bf16_f32 v{t}, v{t}, v{t}
        v_lshlrev_b32 v{t}, 16, v{t}
        v_cvt_u32_f32 v{t}, v{t}
        v_lshrrev_b32 v{t+1}, 7, v{t}
        v_and_b32 v{t+2}, 7, v{t}
        v_bfe_u32 v{t+3}, v{t}, 3, 4
        v_lshl_add_u32 v{t+4}, v{t+1}, 3, v{t+2}
        v_lshrrev_b32 v{t+5}, 1, v{t+2}
        v_lshl_add_u32 v{t+5}, v{t+1}, 2, v{t+5}
        v_add_u32 v{t+5}, 8, v{t+5}
        v_cmp_gt_u32 s[{m}:{m+1}], 2, v{t+1}
        v_cndmask_b32 v{t+4}, v{t+5}, v{t+4}, s[{m}:{m+1}]
        v_lshrrev_b32 v{t+5}, 2, v{t+2}
        v_lshl_add_u32 v{t+5}, v{t+1}, 1, v{t+5}
        v_add_u32 v{t+5}, 16, v{t+5}
        v_cmp_gt_u32 s[{m}:{m+1}], 4, v{t+1}
        v_cndmask_b32 v{t+4}, v{t+5}, v{t+4}, s[{m}:{m+1}]
        v_add_u32 v{t+5}, 24, v{t+1}
        v_cmp_gt_u32 s[{m}:{m+1}], 8, v{t+1}
        v_cndmask_b32 v{t+4}, v{t+5}, v{t+4}, s[{m}:{m+1}]
        v_lshl_add_u32 v{t+4}, v{t+4}, 4, v{t+3}
        v_lshlrev_b32 v{112+e}, 2, v{t+4}
        """.split("\n"))
    interleave(a, chains)
    a("""
    s_waitcnt vmcnt(1)
    v_lshlrev_b32 v2, 16, v2
    v_lshlrev_b32 v3, 16, v3
    v_lshlrev_b32 v4, 16, v4
    v_lshlrev_b32 v5, 16, v5
    v_lshlrev_b32 v6, 16, v6
    """)
    a.stamp(1)
    exp_acc(a, 8, 6, 13, 14, 50, 51, 52)
    exp_acc(a, 9, 2, 15, 16, 50, 51, 52)
    bf16r_pair(a, 8, 9, 13)
    a(f"""
    v_mul_f32 v24, -v9, v8
    v_mul_f32 v25, v3, v8
    v_mul_f32 v26, v4, v8
    v_mul_f32 v27, v5, v8
    v_mul_f32 v24, s50, v24
    v_mul_f32 v25, s53, v25
    v_add_f32 v26, v26, v26
    v_add_f32 v27, v27, v27
    v_and_b32 v13, 127, v0
    v_lshlrev_b32 v13, 4, v13
    ds_write_b128 v13, v[24:27] offset:{PARAM}
    v_add_f32 v14, abs(v26), abs(v27)
    """)
    allreduce(a, [14], [15])
    a(f"""
    v_lshlrev_b32 v16, 2, v12
    ds_write_b32 v16, v14 offset:{MAXS}
    s_waitcnt lgkmcnt(0)
    s_barrier
    v_mov_b32 v16, 0
    ds_read_b64 v[148:149], v16 offset:{MAXS}
    v_lshlrev_b32 v13, 5, v12
    v_add_u32 v13, v13, v11
    v_lshlrev_b32 v13, 4, v13
    """)
    for qq in range(8):
        a(f"ds_read_b128 v[{64+4*qq}:{67+4*qq}], v13 offset:{PARAM + 64*qq}")
    for r in range(12):
        a(f"v_mov_b32 v{100+r}, 0")
    a("""
    s_waitcnt lgkmcnt(0)
    v_add_f32 v148, v148, v149
    v_frexp_exp_i32_f32 v15, v148
    v_mov_b32 v16, -100
    v_mov_b32 v17, 100
    v_med3_i32 v15, v15, v16, v17
    v_sub_u32 v153, 15, v15
    v_subrev_u32 v15, 15, v15
    v_ldexp_f32 v148, 1.0, v15
    """)
    def cexp_l(p, er, fi, o_r, o_i, t):
        return [f"v_mul_f32 v{t}, v{er}, v{p}", f"v_mul_f32 v{t+1}, v{fi}, v{p}", f"v_exp_f32 v{t}, v{t}",
                f"v_fract_f32 v{t+1}, v{t+1}", f"v_cos_f32 v{o_r}, v{t+1}", f"v_sin_f32 v{o_i}, v{t+1}",
                f"v_mul_f32 v{o_r}, v{t}, v{o_r}", f"v_mul_f32 v{o_i}, v{t}, v{o_i}"]
    for qq in range(8):
        er, fi, cr, ci = 64 + 4 * qq, 65 + 4 * qq, 66 + 4 * qq, 67 + 4 * qq
        par = qq & 1
        yb = 28 + 2 * par
        chains = [cexp_l(23, er, fi, yb, yb + 1, 32)]
        xbs = []
        for tl in range(3):
            t = 34 + 4 * tl; e_r, e_i = t + 2, t + 3
            xb = 46 + 6 * par + 2 * tl
            xbs.append(xb)
            chains.append(cexp_l(20 + tl, er, fi, e_r, e_i, t) + [
                f"v_mul_f32 v{xb}, v{cr}, v{e_r}", f"v_mul_f32 v{xb+1}, -v{cr}, v{e_i}",
                f"v_fma_f32 v{xb}, -v{ci}, v{e_i}, v{xb}", f"v_fma_f32 v{xb+1}, -v{ci}, v{e_r}, v{xb+1}"])
        interleave(a, chains)
        for h in range(2):
            for tl in range(3):
                a(f"v_mfma_f32_16x16x4_f32 v[{100+4*tl}:{103+4*tl}], v{xbs[tl]+h}, v{yb+h}, v[{100+4*tl}:{103+4*tl}]")
    a.stamp(2)
    a("""
    v_mul_u32_u24 v13, 3072, v12
    v_lshl_add_u32 v13, v11, 8, v13
    v_lshl_add_u32 v13, v10, 2, v13
    """)
    for tl in range(3):
        for r in range(4):
            a(f"ds_write_b32 v13, v{100+4*tl+r} offset:{PART + tl*1024 + r*64}")
    a("v_and_b32 v7, 7, v0")
    a("s_waitcnt lgkmcnt(0)\ns_barrier")
    for e in range(8):
        for w in range(4):
            a(f"ds_read_b32 v{72+4*e+w}, v{112+e} offset:{PART + 3072*w}")
    a("s_waitcnt lgkmcnt(0)")
    for e in range(8):
        b = 72 + 4 * e
        a(f"v_add_f32 v{b}, v{b}, v{b+1}\nv_add_f32 v{b+2}, v{b+2}, v{b+3}")
    for e in range(8):
        b = 72 + 4 * e
        a(f"v_add_f32 v{64+e}, v{b}, v{b+2}")
    for e in range(8): a(f"v_ldexp_f32 v{64+e}, v{64+e}, v153")
    for e in range(8): a(f"v_cvt_f16_f32 v{64+e}, v{64+e}")
    for e in range(4): a(f"v_pack_b32_f16 v{16+e}, v{64+2*e}, v{65+2*e}")
    a(f"""
    ds_write_b128 v151, v[16:19] offset:{KC_OFF}
    v_mov_b32 v40, 0
    v_mov_b32 v41, 0
    v_mov_b32 v42, 0
    v_mov_b32 v43, 0
    v_lshrrev_b32 v6, 3, v0
    v_mul_u32_u24 v6, {KC_CS}, v6
    v_lshl_add_u32 v6, v7, 4, v6
    v_cmp_gt_u32 vcc, 8, v0
    s_and_saveexec_b64 s[48:49], vcc
    ds_write_b128 v6, v[40:43] offset:{KC_OFF + 4096}
    s_mov_b64 exec, s[48:49]
    """)
    a("""
    v_readfirstlane_b32 s58, v12
    s_cmp_lg_u32 s58, 0
    s_cbranch_scc1 K2_NOPOLL
    """)
    srd(a, 60, 12, 13, 256)
    a("v_mov_b32 v58, 0")
    a.label("K2_POLL")
    a("""
    buffer_load_dword v59, v58, s[60:63], 0 offen sc1
    s_waitcnt vmcnt(0)
    v_readfirstlane_b32 s58, v59
    s_cmp_ge_u32 s58, 128
    s_cbranch_scc1 K2_POLLED
    s_sleep 16
    """)
    a.branch_back("s_branch", "K2_POLL")
    a.label("K2_POLLED")
    a.label("K2_NOPOLL")
    a(f"""
    s_waitcnt lgkmcnt(0)
    s_barrier
    buffer_load_dwordx4 v[144:147], v150, s[40:43], 0 offen sc1
    ds_read_b128 v[20:23], v151 offset:{KC_OFF + 16}
    v_mov_b32 v8, v10
    v_mov_b32 v9, v11
    v_mov_b32 v10, v12
    v_readfirstlane_b32 s42, v12
    s_waitcnt lgkmcnt(0)
    """)
    a.stamp(3)
    for k in range(7):
        a(f"v_alignbit_b32 v{32+k}, v{17+k}, v{16+k}, 16")
    for j in range(4):
        a(f"v_mov_b32 v{48+j}, v{17+j}\nv_mov_b32 v{52+j}, v{19+j}\nv_mov_b32 v{56+j}, v{33+j}\nv_mov_b32 v{60+j}, v{35+j}")
    srcs = {1: 32, 2: 48, 3: 56, 4: 18, 5: 34, 6: 52, 7: 60}
    for c in range(1, 8):
        a(f"ds_write_b128 v151, v[{srcs[c]}:{srcs[c]+3}] offset:{KC_OFF + c*KC_CS}")
    a(f"""
    v_cmp_gt_u32 vcc, 64, v0
    s_and_saveexec_b64 s[48:49], vcc
    ds_write_b128 v6, v[40:43] offset:{KC_OFF + 4096}
    s_mov_b64 exec, s[48:49]
    """)
    a("""
    s_mul_i32 s43, s42, 6
    s_cmp_eq_u32 s42, 3
    s_cselect_b32 s56, 2, 0
    s_add_u32 s43, s43, s56
    s_cmp_lt_u32 s42, 2
    s_cselect_b32 s54, 3, 2
    s_cmp_eq_u32 s42, 3
    s_cselect_b32 s54, 0, s54
    s_cmp_lt_u32 s42, 2
    s_cselect_b32 s55, 0, 2
    s_cmp_eq_u32 s42, 3
    s_cselect_b32 s55, 6, s55
    """)
    a(f"""
    v_and_b32 v13, 7, v8
    v_sub_u32 v13, 7, v13
    v_mul_u32_u24 v11, {KC_CS}, v13
    v_lshrrev_b32 v13, 3, v8
    v_sub_u32 v13, v9, v13
    v_lshl_add_u32 v11, v13, 4, v11
    s_lshl_b32 s57, s43, 7
    s_sub_u32 s57, {KC_OFF + 4080 - 96}, s57
    v_add_u32 v11, s57, v11
    v_mul_u32_u24 v12, {U_RS}, v8
    v_lshl_add_u32 v12, v9, 4, v12
    s_mul_i32 s57, s43, {U_RS}
    s_sub_u32 s57, {U_OFF + 15*U_RS}, s57
    v_add_u32 v12, s57, v12
    """)
    for r in range(32):
        a(f"v_mov_b32 v{112+r}, 0")
    a("s_waitcnt vmcnt(0)")
    for j in range(4):
        a(f"""
        v_lshlrev_b32 v58, 16, v{144+j}
        v_and_b32 v59, 0xffff0000, v{144+j}
        v_cvt_pkrtz_f16_f32 v{64+j}, v58, v59
        """)
    a(f"""
    v_lshrrev_b32 v58, 3, v0
    v_mul_u32_u24 v58, {U_RS}, v58
    v_lshl_add_u32 v58, v7, 4, v58
    ds_write_b128 v58, v[64:67] offset:{U_OFF + 15*U_RS}
    """)
    a("s_waitcnt lgkmcnt(0)\ns_barrier")
    a.stamp(4)
    SET = [dict(F=48, G=64), dict(F=80, G=96)]
    def Fr(s, al): b = SET[s]["F"] + 4 * al; return f"v[{b}:{b+3}]"
    def Gr(s, c, be): b = SET[s]["G"] + 8 * c + 4 * be; return f"v[{b}:{b+3}]"
    def acc(c, al): b = 112 + 16 * c + 4 * al; return f"v[{b}:{b+3}]"
    def loads(s, cs):
        for al in range(4):
            a(f"ds_read_b128 {Fr(s, al)}, v11 offset:{96 - 32*al}")
        for c in cs:
            for be in range(2):
                a(f"ds_read_b128 {Gr(s, c, be)}, v12 offset:{2560*c + 64*be}")
    def mf(c, al, fa, gb):
        a(f"v_mfma_f32_16x16x32_f16 {acc(c, al)}, {fa}, {gb}, {acc(c, al)}")
    def iteration(s, cs):
        o = 1 - s
        a("s_waitcnt lgkmcnt(0)")
        for c in cs:
            mf(c, 0, Fr(o, 2), Gr(s, c, 1))
            mf(c, 1, Fr(o, 3), Gr(s, c, 1))
        a(f"v_subrev_u32 v11, 128, v11\nv_subrev_u32 v12, {U_RS}, v12")
        loads(o, cs)
        for c in cs:
            for al in range(4):
                mf(c, al, Fr(s, al), Gr(s, c, 0))
        for c in cs:
            mf(c, 2, Fr(s, 0), Gr(s, c, 1))
            mf(c, 3, Fr(s, 1), Gr(s, c, 1))
    a(f"ds_read_b128 {Fr(1, 2)}, v11 offset:160")
    a(f"ds_read_b128 {Fr(1, 3)}, v11 offset:128")
    loads(0, [0, 1])
    a("s_cmp_eq_u32 s54, 0\ns_cbranch_scc1 K2_L1PRE")
    a.label("K2_L2")
    iteration(0, [0, 1]); iteration(1, [0, 1])
    a("s_sub_u32 s54, s54, 1\ns_cmp_lg_u32 s54, 0")
    a.branch_back("s_cbranch_scc1", "K2_L2")
    a.label("K2_L1PRE")
    a("s_cmp_eq_u32 s55, 0\ns_cbranch_scc1 K2_RED")
    a.label("K2_L1")
    iteration(0, [1]); iteration(1, [1])
    a("s_sub_u32 s55, s55, 1\ns_cmp_lg_u32 s55, 0")
    a.branch_back("s_cbranch_scc1", "K2_L1")
    a.label("K2_RED", fence=False)
    a("s_waitcnt lgkmcnt(0)")
    a.fence(12)
    a.stamp(5)
    a(f"""
    s_barrier
    v_mul_u32_u24 v13, {RED_WS}, v10
    v_mul_u32_u24 v14, {RED_RS}, v8
    v_add_u32 v13, v13, v14
    v_lshl_add_u32 v13, v9, 4, v13
    """)
    for c in range(2):
        for al in range(4):
            a(f"ds_write_b128 v13, {acc(c, al)} offset:{16*c*RED_RS + 64*al}")
    a(f"""
    s_waitcnt lgkmcnt(0)
    s_barrier
    v_lshrrev_b32 v13, 3, v0
    v_mul_u32_u24 v13, {RED_RS}, v13
    v_lshl_add_u32 v13, v7, 5, v13
    """)
    for w in range(4):
        a(f"ds_read_b128 v[{48+8*w}:{51+8*w}], v13 offset:{RED_WS*w}")
        a(f"ds_read_b128 v[{52+8*w}:{55+8*w}], v13 offset:{RED_WS*w+16}")
    a("v_lshlrev_b32 v149, 16, v152\ns_waitcnt lgkmcnt(0)")
    for e in range(8):
        a(f"v_add_f32 v{48+e}, v{48+e}, v{56+e}\nv_add_f32 v{64+e}, v{64+e}, v{72+e}")
    for e in range(8):
        a(f"v_add_f32 v{48+e}, v{48+e}, v{64+e}")
    for e in range(8):
        a(f"v_mul_f32 v{48+e}, v{48+e}, v148")
    chains = []
    for j in range(4):
        x, y = 48 + 2 * j, 49 + 2 * j
        t = 64 + 4 * j
        ch = bf16r_pair_l(x, y, t)
        ch += [f"v_lshlrev_b32 v{t+1}, 16, v{144+j}", f"v_and_b32 v{t+2}, 0xffff0000, v{144+j}",
               f"v_mul_f32 v{t+1}, v{t+1}, v149", f"v_mul_f32 v{t+2}, v{t+2}, v149"]
        ch += bf16r_pair_l(t + 1, t + 2, t)
        ch += [f"v_add_f32 v{x}, v{x}, v{t+1}", f"v_add_f32 v{y}, v{y}, v{t+2}", f"v_cvt_pk_bf16_f32 v{56+j}, v{x}, v{y}"]
        chains.append(ch)
    interleave(a, chains)
    a("buffer_store_dwordx4 v[56:59], v150, s[44:47], 0 offen" + SFLAG)
    a.stamp(6)
    a.dump_stamps(7, 100, 2)
    a.rt_end(0)
    a("s_endpgm")
    gen_ln1_256(a)
    gen2.gen_k2_tr(a)
    return kd("k2_kernel", 160)


def gen_tr(a):
    a.label("K1_TR")
    a.hist = []
    a("""
    s_load_dwordx2 s[4:5], s[0:1], 64
    s_load_dwordx2 s[6:7], s[0:1], 80
    s_load_dwordx2 s[14:15], s[0:1], 112
    s_sub_u32 s3, s2, 128
    v_lshrrev_b32 v30, 8, v0
    v_and_b32 v0, 255, v0
    s_waitcnt lgkmcnt(0)
    s_cmp_ge_u32 s3, 88
    s_cbranch_scc1 K1_TR2
    """)
    srd(a, 16, 4, 5, D * F * 2); srd(a, 20, 14, 15, F * D * 2, WS_W1T)
    a("""
    s_lshl_b32 s3, s3, 1
    v_add_u32 v31, s3, v30
    v_and_b32 v32, 7, v31
    v_lshrrev_b32 v33, 3, v31
    s_mov_b32 s42, %d
    s_mov_b32 s43, %d
    s_branch K1_TRC
    """ % (F * 2, D * 2))
    a.label("K1_TR2")
    srd(a, 16, 6, 7, F * D * 2); srd(a, 20, 14, 15, D * FP * 2, WS_W2T)
    a("""
    s_sub_u32 s3, s3, 88
    s_lshl_b32 s3, s3, 1
    v_add_u32 v31, s3, v30
    v_and_b32 v33, 7, v31
    v_lshrrev_b32 v32, 3, v31
    s_mov_b32 s42, %d
    s_mov_b32 s43, %d
    """ % (D * 2, FP * 2))
    a.label("K1_TRC")
    a("""
    v_lshrrev_b32 v1, 3, v0
    v_and_b32 v2, 7, v0
    v_lshl_add_u32 v3, v32, 6, v1
    v_mul_lo_u32 v3, v3, s42
    v_lshl_add_u32 v3, v2, 4, v3
    v_lshl_add_u32 v3, v33, 7, v3
    s_lshl_b32 s46, s42, 5
    v_add_u32 v4, s46, v3
    buffer_load_dwordx4 v[8:11], v3, s[16:19], 0 offen
    buffer_load_dwordx4 v[12:15], v4, s[16:19], 0 offen
    v_mul_u32_u24 v34, 9216, v30
    v_mul_u32_u24 v5, 144, v1
    v_lshl_add_u32 v5, v2, 4, v5
    v_add_u32 v5, v5, v34
    v_lshrrev_b32 v6, 2, v0
    v_and_b32 v7, 3, v0
    v_mul_u32_u24 v16, 2304, v7
    v_lshl_add_u32 v16, v6, 1, v16
    v_add_u32 v16, v16, v34
    v_lshl_add_u32 v17, v33, 6, v6
    v_mul_lo_u32 v17, v17, s43
    v_lshl_add_u32 v17, v7, 5, v17
    v_lshl_add_u32 v17, v32, 7, v17
    s_waitcnt vmcnt(0)
    ds_write_b128 v5, v[8:11]
    ds_write_b128 v5, v[12:15] offset:4608
    s_waitcnt lgkmcnt(0)
    s_barrier
    """)
    for e in range(16):
        a(f"ds_read_u16 v{36 + e}, v16 offset:{144*e}")
    a("s_waitcnt lgkmcnt(0)")
    for e in range(8):
        a(f"v_lshl_or_b32 v{20+e}, v{37+2*e}, 16, v{36+2*e}")
    a("""
    buffer_store_dwordx4 v[20:23], v17, s[20:23], 0 offen
    buffer_store_dwordx4 v[24:27], v17, s[20:23], 0 offen offset:16
    """)
    a.rt_end(0)


def gen_ln1_256(a):
    a.label("K2_LN")
    a.hist = []
    a("""
    s_setprio 3
    s_sub_u32 s2, s2, 512
    s_load_dwordx2 s[4:5], s[0:1], 0
    s_load_dwordx4 s[12:15], s[0:1], 104
    s_mov_b32 s50, 0x3727c5ac
    s_mov_b32 s51, 0x3b000000
    v_and_b32 v1, 63, v0
    v_lshrrev_b32 v2, 6, v0
    s_lshl_b32 s6, s2, 14
    v_lshlrev_b32 v3, 12, v2
    v_lshl_add_u32 v3, v1, 4, v3
    v_add_u32 v3, s6, v3
    s_waitcnt lgkmcnt(0)
    """)
    srd(a, 16, 4, 5, L * D * 2)
    for k in range(4):
        a(f"buffer_load_dwordx4 v[{16+4*k}:{19+4*k}], v3, s[16:19], 0 offen offset:{1024*k}")
    srd(a, 20, 14, 15, L * D * 2, WS_UT); srd(a, 24, 12, 13, 256)
    a("""
    v_mul_u32_u24 v4, 264, v1
    v_lshl_add_u32 v4, v2, 3, v4
    v_lshrrev_b32 v5, 1, v0
    v_lshlrev_b32 v6, 5, v5
    v_lshrrev_b32 v5, 3, v5
    v_lshl_add_u32 v6, v5, 3, v6
    v_and_b32 v5, 1, v0
    v_lshl_add_u32 v6, v5, 4, v6
    v_lshlrev_b32 v7, 4, v0
    v_add_u32 v7, s6, v7
    v_add_u32 v8, 4096, v7
    v_add_u32 v9, 8192, v7
    v_add_u32 v10, 12288, v7
    s_waitcnt vmcnt(0)
    """)
    for k in range(4):
        for e in range(4):
            a(f"v_lshlrev_b32 v{32+8*k+2*e}, 16, v{16+4*k+e}")
            a(f"v_and_b32 v{33+8*k+2*e}, 0xffff0000, v{16+4*k+e}")
    layernormN(a, 4, 32, 64, 50, 51)
    for c in range(8):
        a(f"v_cvt_pk_bf16_f32 v{16+2*c}, v{32+c}, v{40+c}")
        a(f"v_cvt_pk_bf16_f32 v{17+2*c}, v{48+c}, v{56+c}")
    for c in range(8):
        a(f"ds_write_b64 v4, v[{16+2*c}:{17+2*c}] offset:{32*c}")
    a("s_waitcnt lgkmcnt(0)\ns_barrier")
    for i in range(4):
        a(f"ds_read_b64 v[{16+4*i}:{17+4*i}], v6 offset:{4224*i}")
        a(f"ds_read_b64 v[{18+4*i}:{19+4*i}], v6 offset:{4224*i+8}")
    a("s_waitcnt lgkmcnt(0)")
    for i in range(4):
        a(f"buffer_store_dwordx4 v[{16+4*i}:{19+4*i}], v{7+i}, s[20:23], 0 offen sc1")
    a("""
    s_waitcnt vmcnt(0)
    s_barrier
    v_mov_b32 v11, 0
    v_mov_b32 v12, 1
    v_cmp_eq_u32 vcc, 0, v0
    s_and_saveexec_b64 s[30:31], vcc
    buffer_atomic_add v12, v11, s[24:27], 0 offen sc1
    s_mov_b64 exec, s[30:31]
    """)
    a.rt_end(0)
    a("s_endpgm")
```

```python
from asmlib import Asm
from gen import *

def layernormN(a, NT, V, S, sEps, sInvD):
    R = range(NT)
    sm = [S + i for i in R]; tm = [S + NT + i for i in R]; q = [S + 2 * NT + i for i in R]
    rr = [S + 3 * NT + i for i in R]; sd = [S + 4 * NT + i for i in R]; T = S + 5 * NT
    for k in R:
        b = V + 8 * k
        a(f"v_add_f32 v{sm[k]}, v{b}, v{b+1}\nv_add_f32 v{tm[k]}, v{b+2}, v{b+3}\nv_add_f32 v{q[k]}, v{b+4}, v{b+5}\nv_add_f32 v{rr[k]}, v{b+6}, v{b+7}")
    for k in R:
        a(f"v_add_f32 v{sm[k]}, v{sm[k]}, v{tm[k]}\nv_add_f32 v{q[k]}, v{q[k]}, v{rr[k]}")
    for k in R:
        a(f"v_add_f32 v{sm[k]}, v{sm[k]}, v{q[k]}")
    allreduce(a, sm, tm)
    for k in R:
        a(f"v_mul_f32 v{sm[k]}, s{sInvD}, v{sm[k]}")
    chains = []
    for k in R:
        b = V + 8 * k
        for half in range(2):
            t = tm[k] if half == 0 else rr[k]; acc = q[k] if half == 0 else sd[k]
            ch = []
            for c in range(4):
                ch.append(f"v_sub_f32 v{t}, v{b+4*half+c}, v{sm[k]}")
                ch.append(f"v_mul_f32 v{acc}, v{t}, v{t}" if c == 0 else f"v_fmac_f32 v{acc}, v{t}, v{t}")
            chains.append(ch)
    interleave(a, chains)
    for k in R:
        a(f"v_add_f32 v{q[k]}, v{q[k]}, v{sd[k]}")
    allreduce(a, q, tm)
    for k in R:
        a(f"v_mul_f32 v{q[k]}, s{sInvD}, v{q[k]}")
    interleave(a, [bf16r_pair_l(sm[k], q[k], tm[k]) for k in R])
    for k in R:
        a(f"v_add_f32 v{q[k]}, s{sEps}, v{q[k]}")
    interleave(a, [bf16r_pair_l(q[k], q[k + 1], tm[k]) for k in range(0, NT, 2)])
    for k in R: a(f"v_sqrt_f32 v{sd[k]}, v{q[k]}")
    for k in R: a(f"v_rcp_f32 v{rr[k]}, v{sd[k]}")
    for k in R: a(f"v_fma_f32 v{tm[k]}, -v{sd[k]}, v{sd[k]}, v{q[k]}")
    for k in R: a(f"v_mul_f32 v{rr[k]}, 0.5, v{rr[k]}")
    for k in R: a(f"v_fma_f32 v{sd[k]}, v{tm[k]}, v{rr[k]}, v{sd[k]}")
    interleave(a, [bf16r_pair_l(sd[k], sd[k + 1], tm[k]) for k in range(0, NT, 2)])
    for k in R: a(f"v_rcp_f32 v{rr[k]}, v{sd[k]}")
    for k in R: a(f"v_fma_f32 v{tm[k]}, -v{sd[k]}, v{rr[k]}, 1.0")
    for k in R: a(f"v_fma_f32 v{rr[k]}, v{tm[k]}, v{rr[k]}, v{rr[k]}")
    chains = []
    for k in R:
        b = V + 8 * k
        for half in range(2):
            t0, t1 = T + 4 * k + 2 * half, T + 4 * k + 2 * half + 1
            ch = []
            for c in range(4 * half, 4 * half + 4, 2):
                x, y = b + c, b + c + 1
                ch += [f"v_sub_f32 v{x}, v{x}, v{sm[k]}", f"v_sub_f32 v{y}, v{y}, v{sm[k]}"]
                ch += bf16r_pair_l(x, y, t0)
                ch += [f"v_mul_f32 v{t0}, v{x}, v{rr[k]}", f"v_mul_f32 v{t1}, v{y}, v{rr[k]}",
                       f"v_fma_f32 v{x}, -v{t0}, v{sd[k]}, v{x}", f"v_fma_f32 v{y}, -v{t1}, v{sd[k]}, v{y}",
                       f"v_fma_f32 v{x}, v{x}, v{rr[k]}, v{t0}", f"v_fma_f32 v{y}, v{y}, v{rr[k]}, v{t1}"]
                ch += bf16r_pair_l(x, y, t0)
            chains.append(ch)
    interleave(a, chains)

K1_LDS = 18432
def gen_k1(a):
    kernel_header(a, "k1_kernel")
    a.rt_start()
    a("""
    s_cmp_ge_u32 s2, 304
    s_cbranch_scc1 K1_END
    s_cmp_ge_u32 s2, 128
    s_cbranch_scc1 K1_TR
    s_load_dwordx2 s[4:5], s[0:1], 0
    s_load_dwordx2 s[14:15], s[0:1], 112
    s_mov_b32 s50, 0x3727c5ac
    s_mov_b32 s51, 0x3b000000
    v_and_b32 v1, 63, v0
    v_lshrrev_b32 v2, 6, v0
    s_lshl_b32 s6, s2, 14
    v_lshlrev_b32 v3, 11, v2
    v_lshl_add_u32 v3, v1, 4, v3
    v_add_u32 v3, s6, v3
    s_waitcnt lgkmcnt(0)
    """)
    srd(a, 16, 4, 5, L * D * 2)
    for k in range(2):
        a(f"buffer_load_dwordx4 v[{16+4*k}:{19+4*k}], v3, s[16:19], 0 offen offset:{1024*k}")
    srd(a, 20, 14, 15, L * D * 2, WS_UT)
    a("""
    v_mul_u32_u24 v4, 264, v1
    v_lshl_add_u32 v4, v2, 2, v4
    v_lshrrev_b32 v5, 1, v0
    v_lshlrev_b32 v6, 5, v5
    v_lshrrev_b32 v5, 3, v5
    v_lshl_add_u32 v6, v5, 3, v6
    v_and_b32 v5, 1, v0
    v_lshl_add_u32 v6, v5, 4, v6
    v_lshlrev_b32 v7, 4, v0
    v_add_u32 v7, s6, v7
    v_add_u32 v8, 8192, v7
    s_waitcnt vmcnt(0)
    """)
    for k in range(2):
        for e in range(4):
            a(f"v_lshlrev_b32 v{32+8*k+2*e}, 16, v{16+4*k+e}")
            a(f"v_and_b32 v{33+8*k+2*e}, 0xffff0000, v{16+4*k+e}")
    layernormN(a, 2, 32, 48, 50, 51)
    for c in range(8):
        a(f"v_cvt_pk_bf16_f32 v{16+c}, v{32+c}, v{40+c}")
    for c in range(8):
        a(f"ds_write_b32 v4, v{16+c} offset:{32*c}")
    a("s_waitcnt lgkmcnt(0)\ns_barrier")
    for i in range(2):
        a(f"ds_read_b64 v[{16+4*i}:{17+4*i}], v6 offset:{8448*i}")
        a(f"ds_read_b64 v[{18+4*i}:{19+4*i}], v6 offset:{8448*i+8}")
    a("""
    s_waitcnt lgkmcnt(0)
    buffer_store_dwordx4 v[16:19], v7, s[20:23], 0 offen
    buffer_store_dwordx4 v[20:23], v8, s[20:23], 0 offen
    """)
    a.rt_end(0)
    a("s_endpgm")
    gen_tr(a)
    a.label("K1_END")
    a("s_endpgm")
    return kd("k1_kernel", 72)

K3_LDS = 17408
def gen_k3(a):
    kernel_header(a, "k3_kernel")
    a.rt_start()
    a("""
    s_cmp_ge_u32 s2, 128
    s_cbranch_scc1 K3_END
    s_load_dwordx2 s[4:5], s[0:1], 0
    s_load_dwordx2 s[14:15], s[0:1], 112
    s_mov_b32 s50, 0x3727c5ac
    s_mov_b32 s51, 0x3b000000
    v_and_b32 v1, 63, v0
    v_lshrrev_b32 v2, 6, v0
    s_lshl_b32 s6, s2, 14
    v_lshlrev_b32 v3, 11, v2
    v_lshl_add_u32 v3, v1, 4, v3
    v_add_u32 v3, s6, v3
    v_lshlrev_b32 v7, 4, v0
    v_add_u32 v7, s6, v7
    v_add_u32 v8, 8192, v7
    s_waitcnt lgkmcnt(0)
    """)
    srd(a, 20, 14, 15, L * D * 2, WS_T3)
    a("""
    buffer_load_dwordx4 v[72:75], v7, s[20:23], 0 offen
    buffer_load_dwordx4 v[76:79], v8, s[20:23], 0 offen
    """)
    srd(a, 16, 4, 5, L * D * 2)
    for k in range(2):
        a(f"buffer_load_dwordx4 v[{16+4*k}:{19+4*k}], v3, s[16:19], 0 offen offset:{1024*k}")
    srd(a, 24, 14, 15, L * D * 2, WS_H); srd(a, 28, 14, 15, L * D * 2, WS_Z)
    a("""
    v_lshrrev_b32 v5, 1, v0
    v_lshlrev_b32 v6, 5, v5
    v_lshrrev_b32 v5, 3, v5
    v_lshl_add_u32 v6, v5, 3, v6
    v_and_b32 v5, 1, v0
    v_lshl_add_u32 v6, v5, 4, v6
    v_mul_u32_u24 v4, 264, v1
    v_lshl_add_u32 v4, v2, 2, v4
    s_waitcnt vmcnt(2)
    """)
    for i in range(2):
        a(f"ds_write_b64 v6, v[{72+4*i}:{73+4*i}] offset:{8448*i}")
        a(f"ds_write_b64 v6, v[{74+4*i}:{75+4*i}] offset:{8448*i+8}")
    a("s_waitcnt lgkmcnt(0)\ns_barrier")
    for c in range(8):
        a(f"ds_read_b32 v{72+c}, v4 offset:{32*c}")
    a("s_waitcnt vmcnt(0) lgkmcnt(0)")
    for k in range(2):
        for e in range(4):
            a(f"v_lshlrev_b32 v{32+8*k+2*e}, 16, v{16+4*k+e}")
            a(f"v_and_b32 v{33+8*k+2*e}, 0xffff0000, v{16+4*k+e}")
    for c in range(8):
        a(f"v_lshlrev_b32 v{48+c}, 16, v{72+c}\nv_and_b32 v{56+c}, 0xffff0000, v{72+c}")
    for c in range(8):
        a(f"v_add_f32 v{32+c}, v{32+c}, v{48+c}\nv_add_f32 v{40+c}, v{40+c}, v{56+c}")
    for k in range(2):
        for e in range(4):
            a(f"v_cvt_pk_bf16_f32 v{16+4*k+e}, v{32+8*k+2*e}, v{33+8*k+2*e}")
    for k in range(2):
        for e in range(4):
            a(f"v_lshlrev_b32 v{32+8*k+2*e}, 16, v{16+4*k+e}")
            a(f"v_and_b32 v{33+8*k+2*e}, 0xffff0000, v{16+4*k+e}")
    for k in range(2):
        a(f"buffer_store_dwordx4 v[{16+4*k}:{19+4*k}], v3, s[24:27], 0 offen offset:{1024*k}{SFLAG}")
    layernormN(a, 2, 32, 48, 50, 51)
    layernormN(a, 2, 32, 48, 50, 51)
    for k in range(2):
        for e in range(4):
            a(f"v_cvt_pk_bf16_f32 v{72+4*k+e}, v{32+8*k+2*e}, v{33+8*k+2*e}")
    for k in range(2):
        a(f"buffer_store_dwordx4 v[{72+4*k}:{75+4*k}], v3, s[28:31], 0 offen offset:{1024*k}{SFLAG}")
    a.rt_end(1)
    a.label("K3_END")
    a("s_endpgm")
    return kd("k3_kernel", 80)

U_OFF = 256; U_RS = 160; KC_OFF = 7936; KC_CS = 4288
K2_LDS = KC_OFF + 8 * KC_CS
RED_WS = 8704; RED_RS = 272
PARAM = KC_OFF + 4 * KC_CS; PART = PARAM + 2048; MAXS = 0
def gen_k2(a):
    import gen2
    kernel_header(a, "k2_kernel")
    a.rt_start()
    LNSEL = ("s_cmp_lt_u32 s2, 128\n    s_cbranch_scc1 K2_LN\n    s_sub_u32 s2, s2, 128" if os.environ.get("LNFIRST") else "s_cmp_ge_u32 s2, 512\n    s_cbranch_scc1 K2_LN")
    a(f"""
    s_cmp_ge_u32 s2, 992
    s_cbranch_scc1 K2_END
    s_cmp_ge_u32 s2, 640
    s_cbranch_scc1 K2_TR
    {LNSEL}
    s_load_dwordx4 s[4:7], s[0:1], 8
    s_load_dwordx4 s[8:11], s[0:1], 24
    s_load_dwordx4 s[36:39], s[0:1], 40
    s_load_dwordx4 s[12:15], s[0:1], 104
    s_mov_b32 s50, 0x%x
    s_mov_b32 s51, 0x%x
    s_mov_b32 s52, 0x%x
    s_mov_b32 s53, 0x%x
    v_and_b32 v1, 127, v0
    v_lshlrev_b32 v1, 1, v1
    s_lshl_b32 s3, s2, 8
    v_add_u32 v1, s3, v1
    s_lshl_b32 s3, s2, 1
    v_mov_b32 v7, s3
    v_lshrrev_b32 v150, 1, v0
    v_lshlrev_b32 v150, 14, v150
    v_and_b32 v3, 1, v0
    v_lshl_add_u32 v150, v3, 4, v150
    s_lshl_b32 s3, s2, 5
    v_add_u32 v150, s3, v150
    s_waitcnt lgkmcnt(0)
    """ % (L2E, L2E_LO, LN2, INV2PI))
    a.stamp(0)
    srd(a, 32, 36, 37, D * 2)
    a("buffer_load_ushort v6, v7, s[32:35], 0 offen")
    srd(a, 16, 4, 5, D * N * 2)
    a("buffer_load_ushort v2, v1, s[16:19], 0 offen")
    srd(a, 20, 6, 7, D * N * 2)
    a("buffer_load_ushort v3, v1, s[20:23], 0 offen")
    srd(a, 24, 8, 9, D * N * 2)
    a("buffer_load_ushort v4, v1, s[24:27], 0 offen")
    srd(a, 28, 10, 11, D * N * 2)
    a("buffer_load_ushort v5, v1, s[28:31], 0 offen")
    srd(a, 40, 14, 15, D * L * 2, WS_UT)
    srd(a, 32, 38, 39, D * 2)
    a("buffer_load_ushort v152, v7, s[32:35], 0 offen")
    srd(a, 44, 14, 15, D * L * 2, WS_T3)
    a("""
    v_mov_b32 v40, 0
    v_mov_b32 v41, 0
    v_mov_b32 v42, 0
    v_mov_b32 v43, 0
    v_lshlrev_b32 v151, 4, v0
    v_cmp_gt_u32 vcc, 166, v0
    s_and_saveexec_b64 s[48:49], vcc
    ds_write_b128 v151, v[40:43]
    s_mov_b64 exec, s[48:49]
    v_and_b32 v10, 15, v0
    v_bfe_u32 v11, v0, 4, 2
    v_lshrrev_b32 v12, 6, v0
    v_lshrrev_b32 v13, 3, v10
    v_and_b32 v14, 7, v10
    v_lshl_add_u32 v20, v13, 7, v14
    v_lshrrev_b32 v13, 2, v10
    v_and_b32 v14, 3, v10
    v_lshlrev_b32 v13, 7, v13
    v_lshl_add_u32 v13, v14, 1, v13
    v_add_u32 v13, 256, v13
    v_subrev_u32 v14, 8, v10
    v_lshrrev_b32 v15, 1, v14
    v_and_b32 v14, 1, v14
    v_lshlrev_b32 v15, 7, v15
    v_lshl_add_u32 v15, v14, 2, v15
    v_add_u32 v15, 512, v15
    v_cmp_gt_u32 vcc, 8, v10
    v_cndmask_b32 v21, v15, v13, vcc
    v_lshlrev_b32 v13, 7, v10
    v_add_u32 v13, 1024, v13
    v_cmp_gt_u32 vcc, 9, v10
    v_cndmask_b32 v22, 0, v13, vcc
    v_lshlrev_b32 v23, 3, v10
    v_cvt_f32_u32 v20, v20
    v_cvt_f32_u32 v21, v21
    v_cvt_f32_u32 v22, v22
    v_cvt_f32_u32 v23, v23
    v_lshlrev_b32 v13, 3, v0
    v_sub_u32 v13, 2047, v13
    """)
    chains = []
    for e in range(8):
        t = 64 + 6 * e; m = 54 + 2 * e
        chains.append(f"""
        v_subrev_u32 v{t}, {e}, v13
        v_cvt_f32_u32 v{t}, v{t}
        v_cvt_pk_bf16_f32 v{t}, v{t}, v{t}
        v_lshlrev_b32 v{t}, 16, v{t}
        v_cvt_u32_f32 v{t}, v{t}
        v_lshrrev_b32 v{t+1}, 7, v{t}
        v_and_b32 v{t+2}, 7, v{t}
        v_bfe_u32 v{t+3}, v{t}, 3, 4
        v_lshl_add_u32 v{t+4}, v{t+1}, 3, v{t+2}
        v_lshrrev_b32 v{t+5}, 1, v{t+2}
        v_lshl_add_u32 v{t+5}, v{t+1}, 2, v{t+5}
        v_add_u32 v{t+5}, 8, v{t+5}
        v_cmp_gt_u32 s[{m}:{m+1}], 2, v{t+1}
        v_cndmask_b32 v{t+4}, v{t+5}, v{t+4}, s[{m}:{m+1}]
        v_lshrrev_b32 v{t+5}, 2, v{t+2}
        v_lshl_add_u32 v{t+5}, v{t+1}, 1, v{t+5}
        v_add_u32 v{t+5}, 16, v{t+5}
        v_cmp_gt_u32 s[{m}:{m+1}], 4, v{t+1}
        v_cndmask_b32 v{t+4}, v{t+5}, v{t+4}, s[{m}:{m+1}]
        v_add_u32 v{t+5}, 24, v{t+1}
        v_cmp_gt_u32 s[{m}:{m+1}], 8, v{t+1}
        v_cndmask_b32 v{t+4}, v{t+5}, v{t+4}, s[{m}:{m+1}]
        v_lshl_add_u32 v{t+4}, v{t+4}, 4, v{t+3}
        v_lshlrev_b32 v{112+e}, 2, v{t+4}
        """.split("\n"))
    interleave(a, chains)
    a("""
    s_waitcnt vmcnt(1)
    v_lshlrev_b32 v2, 16, v2
    v_lshlrev_b32 v3, 16, v3
    v_lshlrev_b32 v4, 16, v4
    v_lshlrev_b32 v5, 16, v5
    v_lshlrev_b32 v6, 16, v6
    """)
    a.stamp(1)
    exp_acc(a, 8, 6, 13, 14, 50, 51, 52)
    exp_acc(a, 9, 2, 15, 16, 50, 51, 52)
    bf16r_pair(a, 8, 9, 13)
    a(f"""
    v_mul_f32 v24, -v9, v8
    v_mul_f32 v25, v3, v8
    v_mul_f32 v26, v4, v8
    v_mul_f32 v27, v5, v8
    v_mul_f32 v24, s50, v24
    v_mul_f32 v25, s53, v25
    v_add_f32 v26, v26, v26
    v_add_f32 v27, v27, v27
    v_and_b32 v13, 127, v0
    v_lshlrev_b32 v13, 4, v13
    ds_write_b128 v13, v[24:27] offset:{PARAM}
    v_add_f32 v14, abs(v26), abs(v27)
    """)
    allreduce(a, [14], [15])
    a(f"""
    v_lshlrev_b32 v16, 2, v12
    ds_write_b32 v16, v14 offset:{MAXS}
    s_waitcnt lgkmcnt(0)
    s_barrier
    v_mov_b32 v16, 0
    ds_read_b64 v[148:149], v16 offset:{MAXS}
    v_lshlrev_b32 v13, 5, v12
    v_add_u32 v13, v13, v11
    v_lshlrev_b32 v13, 4, v13
    """)
    for qq in range(8):
        a(f"ds_read_b128 v[{64+4*qq}:{67+4*qq}], v13 offset:{PARAM + 64*qq}")
    for r in range(12):
        a(f"v_mov_b32 v{100+r}, 0")
    a("""
    s_waitcnt lgkmcnt(0)
    v_add_f32 v148, v148, v149
    v_frexp_exp_i32_f32 v15, v148
    v_mov_b32 v16, -100
    v_mov_b32 v17, 100
    v_med3_i32 v15, v15, v16, v17
    v_sub_u32 v153, 15, v15
    v_subrev_u32 v15, 15, v15
    v_ldexp_f32 v148, 1.0, v15
    """)
    def cexp_l(p, er, fi, o_r, o_i, t):
        return [f"v_mul_f32 v{t}, v{er}, v{p}", f"v_mul_f32 v{t+1}, v{fi}, v{p}", f"v_exp_f32 v{t}, v{t}",
                f"v_fract_f32 v{t+1}, v{t+1}", f"v_cos_f32 v{o_r}, v{t+1}", f"v_sin_f32 v{o_i}, v{t+1}",
                f"v_mul_f32 v{o_r}, v{t}, v{o_r}", f"v_mul_f32 v{o_i}, v{t}, v{o_i}"]
    for qq in range(8):
        er, fi, cr, ci = 64 + 4 * qq, 65 + 4 * qq, 66 + 4 * qq, 67 + 4 * qq
        par = qq & 1
        yb = 28 + 2 * par
        chains = [cexp_l(23, er, fi, yb, yb + 1, 32)]
        xbs = []
        for tl in range(3):
            t = 34 + 4 * tl; e_r, e_i = t + 2, t + 3
            xb = 46 + 6 * par + 2 * tl
            xbs.append(xb)
            chains.append(cexp_l(20 + tl, er, fi, e_r, e_i, t) + [
                f"v_mul_f32 v{xb}, v{cr}, v{e_r}", f"v_mul_f32 v{xb+1}, -v{cr}, v{e_i}",
                f"v_fma_f32 v{xb}, -v{ci}, v{e_i}, v{xb}", f"v_fma_f32 v{xb+1}, -v{ci}, v{e_r}, v{xb+1}"])
        interleave(a, chains)
        for h in range(2):
            for tl in range(3):
                a(f"v_mfma_f32_16x16x4_f32 v[{100+4*tl}:{103+4*tl}], v{xbs[tl]+h}, v{yb+h}, v[{100+4*tl}:{103+4*tl}]")
    a.stamp(2)
    a("""
    v_mul_u32_u24 v13, 3072, v12
    v_lshl_add_u32 v13, v11, 8, v13
    v_lshl_add_u32 v13, v10, 2, v13
    """)
    for tl in range(3):
        for r in range(4):
            a(f"ds_write_b32 v13, v{100+4*tl+r} offset:{PART + tl*1024 + r*64}")
    a("v_and_b32 v7, 7, v0")
    a("s_waitcnt lgkmcnt(0)\ns_barrier")
    for e in range(8):
        for w in range(4):
            a(f"ds_read_b32 v{72+4*e+w}, v{112+e} offset:{PART + 3072*w}")
    a("s_waitcnt lgkmcnt(0)")
    for e in range(8):
        b = 72 + 4 * e
        a(f"v_add_f32 v{b}, v{b}, v{b+1}\nv_add_f32 v{b+2}, v{b+2}, v{b+3}")
    for e in range(8):
        b = 72 + 4 * e
        a(f"v_add_f32 v{64+e}, v{b}, v{b+2}")
    for e in range(8): a(f"v_ldexp_f32 v{64+e}, v{64+e}, v153")
    for e in range(8): a(f"v_cvt_f16_f32 v{64+e}, v{64+e}")
    for e in range(4): a(f"v_pack_b32_f16 v{16+e}, v{64+2*e}, v{65+2*e}")
    a(f"""
    ds_write_b128 v151, v[16:19] offset:{KC_OFF}
    v_mov_b32 v40, 0
    v_mov_b32 v41, 0
    v_mov_b32 v42, 0
    v_mov_b32 v43, 0
    v_lshrrev_b32 v6, 3, v0
    v_mul_u32_u24 v6, {KC_CS}, v6
    v_lshl_add_u32 v6, v7, 4, v6
    v_cmp_gt_u32 vcc, 8, v0
    s_and_saveexec_b64 s[48:49], vcc
    ds_write_b128 v6, v[40:43] offset:{KC_OFF + 4096}
    s_mov_b64 exec, s[48:49]
    """)
    a("""
    v_readfirstlane_b32 s58, v12
    s_cmp_lg_u32 s58, 0
    s_cbranch_scc1 K2_NOPOLL
    """)
    srd(a, 60, 12, 13, 256)
    a("v_mov_b32 v58, 0")
    a.label("K2_POLL")
    a("""
    buffer_load_dword v59, v58, s[60:63], 0 offen sc1
    s_waitcnt vmcnt(0)
    v_readfirstlane_b32 s58, v59
    s_cmp_ge_u32 s58, 128
    s_cbranch_scc1 K2_POLLED
    s_sleep 16
    """)
    a.branch_back("s_branch", "K2_POLL")
    a.label("K2_POLLED")
    a.label("K2_NOPOLL")
    a(f"""
    s_waitcnt lgkmcnt(0)
    s_barrier
    buffer_load_dwordx4 v[144:147], v150, s[40:43], 0 offen sc1
    ds_read_b128 v[20:23], v151 offset:{KC_OFF + 16}
    v_mov_b32 v8, v10
    v_mov_b32 v9, v11
    v_mov_b32 v10, v12
    v_readfirstlane_b32 s42, v12
    s_waitcnt lgkmcnt(0)
    """)
    a.stamp(3)
    for k in range(7):
        a(f"v_alignbit_b32 v{32+k}, v{17+k}, v{16+k}, 16")
    for j in range(4):
        a(f"v_mov_b32 v{48+j}, v{17+j}\nv_mov_b32 v{52+j}, v{19+j}\nv_mov_b32 v{56+j}, v{33+j}\nv_mov_b32 v{60+j}, v{35+j}")
    srcs = {1: 32, 2: 48, 3: 56, 4: 18, 5: 34, 6: 52, 7: 60}
    for c in range(1, 8):
        a(f"ds_write_b128 v151, v[{srcs[c]}:{srcs[c]+3}] offset:{KC_OFF + c*KC_CS}")
    a(f"""
    v_cmp_gt_u32 vcc, 64, v0
    s_and_saveexec_b64 s[48:49], vcc
    ds_write_b128 v6, v[40:43] offset:{KC_OFF + 4096}
    s_mov_b64 exec, s[48:49]
    """)
    a("""
    s_mul_i32 s43, s42, 6
    s_cmp_eq_u32 s42, 3
    s_cselect_b32 s56, 2, 0
    s_add_u32 s43, s43, s56
    s_cmp_lt_u32 s42, 2
    s_cselect_b32 s54, 3, 2
    s_cmp_eq_u32 s42, 3
    s_cselect_b32 s54, 0, s54
    s_cmp_lt_u32 s42, 2
    s_cselect_b32 s55, 0, 2
    s_cmp_eq_u32 s42, 3
    s_cselect_b32 s55, 6, s55
    """)
    a(f"""
    v_and_b32 v13, 7, v8
    v_sub_u32 v13, 7, v13
    v_mul_u32_u24 v11, {KC_CS}, v13
    v_lshrrev_b32 v13, 3, v8
    v_sub_u32 v13, v9, v13
    v_lshl_add_u32 v11, v13, 4, v11
    s_lshl_b32 s57, s43, 7
    s_sub_u32 s57, {KC_OFF + 4080 - 96}, s57
    v_add_u32 v11, s57, v11
    v_mul_u32_u24 v12, {U_RS}, v8
    v_lshl_add_u32 v12, v9, 4, v12
    s_mul_i32 s57, s43, {U_RS}
    s_sub_u32 s57, {U_OFF + 15*U_RS}, s57
    v_add_u32 v12, s57, v12
    """)
    for r in range(32):
        a(f"v_mov_b32 v{112+r}, 0")
    a("s_waitcnt vmcnt(0)")
    for j in range(4):
        a(f"""
        v_lshlrev_b32 v58, 16, v{144+j}
        v_and_b32 v59, 0xffff0000, v{144+j}
        v_cvt_pkrtz_f16_f32 v{64+j}, v58, v59
        """)
    a(f"""
    v_lshrrev_b32 v58, 3, v0
    v_mul_u32_u24 v58, {U_RS}, v58
    v_lshl_add_u32 v58, v7, 4, v58
    ds_write_b128 v58, v[64:67] offset:{U_OFF + 15*U_RS}
    """)
    a("s_waitcnt lgkmcnt(0)\ns_barrier")
    a.stamp(4)
    SET = [dict(F=48, G=64), dict(F=80, G=96)]
    def Fr(s, al): b = SET[s]["F"] + 4 * al; return f"v[{b}:{b+3}]"
    def Gr(s, c, be): b = SET[s]["G"] + 8 * c + 4 * be; return f"v[{b}:{b+3}]"
    def acc(c, al): b = 112 + 16 * c + 4 * al; return f"v[{b}:{b+3}]"
    def loads(s, cs):
        for al in range(4):
            a(f"ds_read_b128 {Fr(s, al)}, v11 offset:{96 - 32*al}")
        for c in cs:
            for be in range(2):
                a(f"ds_read_b128 {Gr(s, c, be)}, v12 offset:{2560*c + 64*be}")
    def mf(c, al, fa, gb):
        a(f"v_mfma_f32_16x16x32_f16 {acc(c, al)}, {fa}, {gb}, {acc(c, al)}")
    def iteration(s, cs):
        o = 1 - s
        a("s_waitcnt lgkmcnt(0)")
        for c in cs:
            mf(c, 0, Fr(o, 2), Gr(s, c, 1))
            mf(c, 1, Fr(o, 3), Gr(s, c, 1))
        a(f"v_subrev_u32 v11, 128, v11\nv_subrev_u32 v12, {U_RS}, v12")
        loads(o, cs)
        for c in cs:
            for al in range(4):
                mf(c, al, Fr(s, al), Gr(s, c, 0))
        for c in cs:
            mf(c, 2, Fr(s, 0), Gr(s, c, 1))
            mf(c, 3, Fr(s, 1), Gr(s, c, 1))
    a(f"ds_read_b128 {Fr(1, 2)}, v11 offset:160")
    a(f"ds_read_b128 {Fr(1, 3)}, v11 offset:128")
    loads(0, [0, 1])
    a("s_cmp_eq_u32 s54, 0\ns_cbranch_scc1 K2_L1PRE")
    a.label("K2_L2")
    iteration(0, [0, 1]); iteration(1, [0, 1])
    a("s_sub_u32 s54, s54, 1\ns_cmp_lg_u32 s54, 0")
    a.branch_back("s_cbranch_scc1", "K2_L2")
    a.label("K2_L1PRE")
    a("s_cmp_eq_u32 s55, 0\ns_cbranch_scc1 K2_RED")
    a.label("K2_L1")
    iteration(0, [1]); iteration(1, [1])
    a("s_sub_u32 s55, s55, 1\ns_cmp_lg_u32 s55, 0")
    a.branch_back("s_cbranch_scc1", "K2_L1")
    a.label("K2_RED", fence=False)
    a("s_waitcnt lgkmcnt(0)")
    a.fence(12)
    a.stamp(5)
    a(f"""
    s_barrier
    v_mul_u32_u24 v13, {RED_WS}, v10
    v_mul_u32_u24 v14, {RED_RS}, v8
    v_add_u32 v13, v13, v14
    v_lshl_add_u32 v13, v9, 4, v13
    """)
    for c in range(2):
        for al in range(4):
            a(f"ds_write_b128 v13, {acc(c, al)} offset:{16*c*RED_RS + 64*al}")
    a(f"""
    s_waitcnt lgkmcnt(0)
    s_barrier
    v_lshrrev_b32 v13, 3, v0
    v_mul_u32_u24 v13, {RED_RS}, v13
    v_lshl_add_u32 v13, v7, 5, v13
    """)
    for w in range(4):
        a(f"ds_read_b128 v[{48+8*w}:{51+8*w}], v13 offset:{RED_WS*w}")
        a(f"ds_read_b128 v[{52+8*w}:{55+8*w}], v13 offset:{RED_WS*w+16}")
    a("v_lshlrev_b32 v149, 16, v152\ns_waitcnt lgkmcnt(0)")
    for e in range(8):
        a(f"v_add_f32 v{48+e}, v{48+e}, v{56+e}\nv_add_f32 v{64+e}, v{64+e}, v{72+e}")
    for e in range(8):
        a(f"v_add_f32 v{48+e}, v{48+e}, v{64+e}")
    for e in range(8):
        a(f"v_mul_f32 v{48+e}, v{48+e}, v148")
    chains = []
    for j in range(4):
        x, y = 48 + 2 * j, 49 + 2 * j
        t = 64 + 4 * j
        ch = bf16r_pair_l(x, y, t)
        ch += [f"v_lshlrev_b32 v{t+1}, 16, v{144+j}", f"v_and_b32 v{t+2}, 0xffff0000, v{144+j}",
               f"v_mul_f32 v{t+1}, v{t+1}, v149", f"v_mul_f32 v{t+2}, v{t+2}, v149"]
        ch += bf16r_pair_l(t + 1, t + 2, t)
        ch += [f"v_add_f32 v{x}, v{x}, v{t+1}", f"v_add_f32 v{y}, v{y}, v{t+2}", f"v_cvt_pk_bf16_f32 v{56+j}, v{x}, v{y}"]
        chains.append(ch)
    interleave(a, chains)
    a("buffer_store_dwordx4 v[56:59], v150, s[44:47], 0 offen" + SFLAG)
    a.stamp(6)
    a.dump_stamps(7, 100, 2)
    a.rt_end(0)
    a("s_endpgm")
    gen_ln1_256(a)
    gen2.gen_k2_tr(a)
    return kd("k2_kernel", 160)


def gen_tr(a):
    a.label("K1_TR")
    a.hist = []
    a("""
    s_load_dwordx2 s[4:5], s[0:1], 64
    s_load_dwordx2 s[6:7], s[0:1], 80
    s_load_dwordx2 s[14:15], s[0:1], 112
    s_sub_u32 s3, s2, 128
    v_lshrrev_b32 v30, 8, v0
    v_and_b32 v0, 255, v0
    s_waitcnt lgkmcnt(0)
    s_cmp_ge_u32 s3, 88
    s_cbranch_scc1 K1_TR2
    """)
    srd(a, 16, 4, 5, D * F * 2); srd(a, 20, 14, 15, F * D * 2, WS_W1T)
    a("""
    s_lshl_b32 s3, s3, 1
    v_add_u32 v31, s3, v30
    v_and_b32 v32, 7, v31
    v_lshrrev_b32 v33, 3, v31
    s_mov_b32 s42, %d
    s_mov_b32 s43, %d
    s_branch K1_TRC
    """ % (F * 2, D * 2))
    a.label("K1_TR2")
    srd(a, 16, 6, 7, F * D * 2); srd(a, 20, 14, 15, D * FP * 2, WS_W2T)
    a("""
    s_sub_u32 s3, s3, 88
    s_lshl_b32 s3, s3, 1
    v_add_u32 v31, s3, v30
    v_and_b32 v33, 7, v31
    v_lshrrev_b32 v32, 3, v31
    s_mov_b32 s42, %d
    s_mov_b32 s43, %d
    """ % (D * 2, FP * 2))
    a.label("K1_TRC")
    a("""
    v_lshrrev_b32 v1, 3, v0
    v_and_b32 v2, 7, v0
    v_lshl_add_u32 v3, v32, 6, v1
    v_mul_lo_u32 v3, v3, s42
    v_lshl_add_u32 v3, v2, 4, v3
    v_lshl_add_u32 v3, v33, 7, v3
    s_lshl_b32 s46, s42, 5
    v_add_u32 v4, s46, v3
    buffer_load_dwordx4 v[8:11], v3, s[16:19], 0 offen
    buffer_load_dwordx4 v[12:15], v4, s[16:19], 0 offen
    v_mul_u32_u24 v34, 9216, v30
    v_mul_u32_u24 v5, 144, v1
    v_lshl_add_u32 v5, v2, 4, v5
    v_add_u32 v5, v5, v34
    v_lshrrev_b32 v6, 2, v0
    v_and_b32 v7, 3, v0
    v_mul_u32_u24 v16, 2304, v7
    v_lshl_add_u32 v16, v6, 1, v16
    v_add_u32 v16, v16, v34
    v_lshl_add_u32 v17, v33, 6, v6
    v_mul_lo_u32 v17, v17, s43
    v_lshl_add_u32 v17, v7, 5, v17
    v_lshl_add_u32 v17, v32, 7, v17
    s_waitcnt vmcnt(0)
    ds_write_b128 v5, v[8:11]
    ds_write_b128 v5, v[12:15] offset:4608
    s_waitcnt lgkmcnt(0)
    s_barrier
    """)
    for e in range(16):
        a(f"ds_read_u16 v{36 + e}, v16 offset:{144*e}")
    a("s_waitcnt lgkmcnt(0)")
    for e in range(8):
        a(f"v_lshl_or_b32 v{20+e}, v{37+2*e}, 16, v{36+2*e}")
    a("""
    buffer_store_dwordx4 v[20:23], v17, s[20:23], 0 offen
    buffer_store_dwordx4 v[24:27], v17, s[20:23], 0 offen offset:16
    """)
    a.rt_end(0)


def gen_ln1_256(a):
    a.label("K2_LN")
    a.hist = []
    a("""
    s_setprio 3
    s_sub_u32 s2, s2, """ + ("0" if os.environ.get("LNFIRST") else "512") + """
    s_load_dwordx2 s[4:5], s[0:1], 0
    s_load_dwordx4 s[12:15], s[0:1], 104
    s_mov_b32 s50, 0x3727c5ac
    s_mov_b32 s51, 0x3b000000
    v_and_b32 v1, 63, v0
    v_lshrrev_b32 v2, 6, v0
    s_lshl_b32 s6, s2, 14
    v_lshlrev_b32 v3, 12, v2
    v_lshl_add_u32 v3, v1, 4, v3
    v_add_u32 v3, s6, v3
    s_waitcnt lgkmcnt(0)
    """)
    srd(a, 16, 4, 5, L * D * 2)
    for k in range(4):
        a(f"buffer_load_dwordx4 v[{16+4*k}:{19+4*k}], v3, s[16:19], 0 offen offset:{1024*k}")
    srd(a, 20, 14, 15, L * D * 2, WS_UT); srd(a, 24, 12, 13, 256)
    a("""
    v_mul_u32_u24 v4, 264, v1
    v_lshl_add_u32 v4, v2, 3, v4
    v_lshrrev_b32 v5, 1, v0
    v_lshlrev_b32 v6, 5, v5
    v_lshrrev_b32 v5, 3, v5
    v_lshl_add_u32 v6, v5, 3, v6
    v_and_b32 v5, 1, v0
    v_lshl_add_u32 v6, v5, 4, v6
    v_lshlrev_b32 v7, 4, v0
    v_add_u32 v7, s6, v7
    v_add_u32 v8, 4096, v7
    v_add_u32 v9, 8192, v7
    v_add_u32 v10, 12288, v7
    s_waitcnt vmcnt(0)
    """)
    for k in range(4):
        for e in range(4):
            a(f"v_lshlrev_b32 v{32+8*k+2*e}, 16, v{16+4*k+e}")
            a(f"v_and_b32 v{33+8*k+2*e}, 0xffff0000, v{16+4*k+e}")
    layernormN(a, 4, 32, 64, 50, 51)
    for c in range(8):
        a(f"v_cvt_pk_bf16_f32 v{16+2*c}, v{32+c}, v{40+c}")
        a(f"v_cvt_pk_bf16_f32 v{17+2*c}, v{48+c}, v{56+c}")
    for c in range(8):
        a(f"ds_write_b64 v4, v[{16+2*c}:{17+2*c}] offset:{32*c}")
    a("s_waitcnt lgkmcnt(0)\ns_barrier")
    for i in range(4):
        a(f"ds_read_b64 v[{16+4*i}:{17+4*i}], v6 offset:{4224*i}")
        a(f"ds_read_b64 v[{18+4*i}:{19+4*i}], v6 offset:{4224*i+8}")
    a("s_waitcnt lgkmcnt(0)")
    for i in range(4):
        a(f"buffer_store_dwordx4 v[{16+4*i}:{19+4*i}], v{7+i}, s[20:23], 0 offen sc1")
    a("""
    s_waitcnt vmcnt(0)
    s_barrier
    v_mov_b32 v11, 0
    v_mov_b32 v12, 1
    v_cmp_eq_u32 vcc, 0, v0
    s_and_saveexec_b64 s[30:31], vcc
    buffer_atomic_add v12, v11, s[24:27], 0 offen sc1
    s_mov_b64 exec, s[30:31]
    """)
    a.rt_end(0)
    a("s_endpgm")
```
